```python
import torch

def _softmax(x, axis=-1):
    return torch.softmax(x, dim=axis)
def _gelu(x):
    return torch.nn.functional.gelu(x, approximate="tanh")
def _silu(x):
    return torch.nn.functional.silu(x)
def _sigmoid(x):
    return torch.sigmoid(x)
def _layernorm(x, axis=-1, eps=1e-5):
    m = x.mean(dim=axis, keepdim=True)
    v = x.var(dim=axis, keepdim=True, unbiased=False)
    return (x - m) / torch.sqrt(v + eps)
def _scatter_add(tgt, idx, src, axis=0):
    return tgt.clone().index_add_(axis, idx, src)
def _segment_sum(src, seg, n):
    out = torch.zeros((n,) + src.shape[1:], dtype=src.dtype)
    return out.index_add_(0, seg, src)
def _pad(x, pw):
    flat = tuple(v for pair in reversed(pw) for v in pair)
    return torch.nn.functional.pad(x, flat)

kernel_name = 'sequential_preLN__compressed_kv_cla__swiglu_ffn__decode'

def setup_inputs():

    _w = (lambda a: (lambda t: t.to(torch.bfloat16) if t.is_floating_point() else t)(torch.as_tensor(a)))
    def _A_setup():
        B, H, Sq, Sk, D, M = 4, 32, 1, 4096, 128, 512
        Dc = 4 * D
        return {
            "x": _w((lambda *s: torch.randn(*s, dtype=torch.bfloat16) * 0.05)(B, Sq, M)),
            "c_kv": _w((lambda *s: torch.randn(*s, dtype=torch.bfloat16) * 0.4)(B, Sk, Dc)),
            "w_q": _w((lambda *s: torch.randn(*s, dtype=torch.bfloat16) * 3.2)(M, H, D) * (M ** -0.5)),
            "w_uk": _w((lambda *s: torch.randn(*s, dtype=torch.bfloat16) * 3.2)(Dc, H, D) * (Dc ** -0.5)),
            "w_uv": _w((lambda *s: torch.randn(*s, dtype=torch.bfloat16) * 0.4)(Dc, H, D) * (Dc ** -0.5)),
            "w_o": _w((lambda *s: torch.randn(*s, dtype=torch.bfloat16) * 0.4)(H, D, M) * ((H * D) ** -0.5)),
        }
    _A_in = _A_setup()

    def _B_setup():
        B, S, D, F = 4, 1, 512, 1792
        return {
            "x": _w((lambda *s: torch.randn(*s, dtype=torch.bfloat16) * 0.05)(B, S, D)),
            "w_gate": _w((lambda *s: torch.randn(*s, dtype=torch.bfloat16) * 0.05)(D, F)),
            "w_up": _w((lambda *s: torch.randn(*s, dtype=torch.bfloat16) * 0.05)(D, F)),
            "w_down": _w((lambda *s: torch.randn(*s, dtype=torch.bfloat16) * 0.05)(F, D)),
        }
    _B_in = _B_setup()

    return {
        "A_x": _A_in["x"],
        "A_c_kv": _A_in["c_kv"],
        "A_w_q": _A_in["w_q"],
        "A_w_uk": _A_in["w_uk"],
        "A_w_uv": _A_in["w_uv"],
        "A_w_o": _A_in["w_o"],
        "B_x": _B_in["x"],
        "B_w_gate": _B_in["w_gate"],
        "B_w_up": _B_in["w_up"],
        "B_w_down": _B_in["w_down"],
    }

def reference(A_x, A_c_kv, A_w_q, A_w_uk, A_w_uv, A_w_o, B_x, B_w_gate, B_w_up, B_w_down):
    def _A_ref(x, c_kv, w_q, w_uk, w_uv, w_o):
        B, Sq, M = x.shape[0], x.shape[1], x.shape[2]
        Sk = c_kv.shape[1]
        H, D = w_q.shape[1], w_q.shape[2]
        q = torch.einsum("bqm,mhd->bhqd", x, w_q)
        k = torch.einsum("bkc,chd->bhkd", c_kv, w_uk)
        v = torch.einsum("bkc,chd->bhkd", c_kv, w_uv)
        scores = torch.einsum("bhqd,bhkd->bhqk", q, k) * (D ** -0.5)
        off = Sk - Sq
        qi = torch.arange(Sq)[:, None]
        kj = torch.arange(Sk)[None, :]
        cmask = kj <= (qi + off)
        scores = torch.where(cmask[None, None], scores, -1e9)
        p = _softmax(scores, axis=-1)
        ctx = torch.einsum("bhqk,bhkd->bhqd", p, v)
        return torch.einsum("bhqd,hdm->bqm", ctx, w_o)

    def _B_ref(x, w_gate, w_up, w_down):
        g = _silu(x @ w_gate)
        u = x @ w_up
        return (g * u) @ w_down

    x = A_x
    h = x + _A_ref(_layernorm(x, axis=-1), A_c_kv, A_w_q, A_w_uk, A_w_uv, A_w_o)
    h2 = h + _B_ref(_layernorm(h, axis=-1), B_w_gate, B_w_up, B_w_down)
    return h2
```

```python
import re

TRANS = ("v_exp_f32", "v_log_f32", "v_rcp_f32", "v_rsq_f32", "v_sqrt_f32", "v_sin_f32", "v_cos_f32")

def _regs(tok):
    tok = tok.strip()
    tok = re.sub(r"^-", "", tok)
    m = re.match(r"^abs\((.*)\)$", tok)
    if m: tok = m.group(1)
    m = re.match(r"^\|(.*)\|$", tok)
    if m: tok = m.group(1)
    m = re.match(r"^([vsa])(\d+)$", tok)
    if m: return {(m.group(1), int(m.group(2)))}
    m = re.match(r"^([vsa])\[(\d+):(\d+)\]$", tok)
    if m: return {(m.group(1), i) for i in range(int(m.group(2)), int(m.group(3)) + 1)}
    if tok in ("vcc", "vcc_lo", "vcc_hi"): return {("vcc", 0)}
    if tok in ("exec", "exec_lo", "exec_hi"): return {("exec", 0)}
    if tok == "m0": return {("m0", 0)}
    return set()

class Ins:
    __slots__ = ("text", "op", "rd", "wr", "cls", "passes", "dpp", "a", "b", "c", "wide_store_data", "states", "lds_dma", "lanesel")
    def __init__(self, text):
        self.text = text
        t = text.split(";")[0].strip()
        parts = t.split(None, 1)
        op = parts[0]
        self.op = op
        rest = parts[1] if len(parts) > 1 else ""
        extra_mods = " ".join(re.findall(r"\s\w+:\[[^\]]*\]", rest))
        rest = re.sub(r"\s\w+:\[[^\]]*\]", "", rest)
        ops = [o.strip() for o in rest.split(",")] if rest else []
        mods = ""
        if ops:
            sp = ops[-1].split(None, 1)
            if len(sp) > 1:
                ops[-1] = sp[0]; mods = sp[1]
        mods += extra_mods
        self.rd = set(); self.wr = set(); self.cls = "other"; self.passes = 0
        self.dpp = False; self.a = self.b = self.c = set(); self.wide_store_data = set(); self.states = 1
        self.lds_dma = False; self.lanesel = set()
        R = [_regs(o) for o in ops]
        if op == "s_nop":
            self.cls = "nop"; self.states = int(ops[0], 0) + 1
        elif op.startswith("v_mfma"):
            self.cls = "mfma"
            self.passes = 8 if "32x32x16" in op else 4
            assert ("32x32x16" in op) or ("16x16x32" in op), op
            self.wr = R[0]; self.a = R[1]; self.b = R[2]; self.c = R[3]
            self.rd = R[1] | R[2] | R[3]
        elif op.startswith("v_"):
            self.cls = "valu"
            if "dpp" in op or "row_" in mods or "quad_perm" in mods or "wave_" in mods:
                self.dpp = True
            if op.startswith("v_cmp"):
                self.wr = R[0]; self.rd = set().union(*R[1:])
                if op.startswith("v_cmpx"): self.wr = self.wr | {("exec", 0)}
            elif op.startswith("v_permlane") and "swap" in op:
                self.wr = R[0] | R[1]; self.rd = R[0] | R[1]
            elif op.startswith(("v_add_co", "v_sub_co", "v_addc_co", "v_subb_co", "v_subrev_co")):
                self.wr = R[0] | R[1]; self.rd = set().union(*R[2:])
            elif op.startswith("v_readlane"):
                self.wr = R[0]; self.rd = R[1] | R[2]; self.lanesel = R[2]
            elif op.startswith("v_writelane"):
                self.wr = R[0]; self.rd = R[0] | R[1] | R[2]; self.lanesel = R[2]
            elif op == "v_nop":
                pass
            else:
                self.wr = R[0]; self.rd = set().union(*R[1:]) if len(R) > 1 else set()
                if op.startswith(("v_fmac", "v_mac", "v_pk_fmac", "v_dot2c")) or self.dpp:
                    self.rd |= R[0]
                if op.startswith("v_cndmask") and len(ops) == 3:
                    self.rd |= {("vcc", 0)}
        elif op.startswith("ds_"):
            self.cls = "ds"
            if op.startswith(("ds_read", "ds_bpermute", "ds_permute", "ds_swizzle")):
                self.wr = R[0]; self.rd = set().union(*R[1:])
            else:
                self.rd = set().union(*R)
        elif op.startswith(("buffer_", "global_")):
            self.cls = "vmem"
            ldsdma = (" lds" in (" " + mods)) or ("_lds_" in op)
            if ldsdma:
                self.lds_dma = True
                self.rd = set().union(*R) | {("m0", 0)}
            elif "load" in op:
                self.wr = R[0]; self.rd = set().union(*R[1:])
                if "d16" in op: self.rd |= R[0]
            elif "store" in op:
                self.rd = set().union(*R)
                data = R[0] if op.startswith("buffer_") else R[1]
                if op.endswith(("x3", "x4")): self.wide_store_data = data
            else:
                self.rd = set().union(*R) if R else set()
                if "sc0" in mods and "atomic" in op: self.wr = R[0]
        elif op.startswith("s_"):
            self.cls = "salu"
            if op.startswith(("s_cmp", "s_cbranch", "s_branch", "s_waitcnt", "s_barrier", "s_endpgm", "s_sleep", "s_setprio", "s_bitcmp")):
                self.rd = set().union(*R) if R else set()
            elif "saveexec" in op:
                self.wr = R[0] | {("exec", 0)}; self.rd = R[1] | {("exec", 0)}
            else:
                self.wr = R[0] if R else set(); self.rd = set().union(*R[1:]) if len(R) > 1 else set()
        else:
            raise ValueError("unknown instruction: " + text)

def _v(s): return {r for r in s if r[0] in ("v", "a")}
def _sg(s): return {r for r in s if r[0] in ("s", "vcc")}

def need(p, c):
    n = 0
    if p.cls == "valu":
        pw = _v(p.wr)
        if c.cls == "mfma" and pw & c.rd: n = max(n, 2)
        if c.cls == "valu":
            if c.dpp and pw & c.rd: n = max(n, 2)
            if c.op.startswith("v_permlane") and pw & c.rd: n = max(n, 2)
            if c.op.startswith(("v_readlane", "v_readfirstlane")) and pw & c.rd: n = max(n, 1)
            if p.op.startswith(TRANS) and pw & (c.rd | c.wr): n = max(n, 1)
        if p.op.startswith(TRANS) and c.cls in ("ds", "vmem") and pw & c.rd: n = max(n, 1)
        ps = _sg(p.wr)
        if ps:
            if c.cls == "valu" and ps & c.rd: n = max(n, 2)
            if c.cls == "valu" and ps & c.lanesel: n = max(n, 4)
            if c.cls == "vmem" and ps & c.rd: n = max(n, 5)
            if c.cls == "salu" and ps & c.rd: n = max(n, 1)
        if ("exec", 0) in p.wr:
            n = max(n, 5)
    if p.cls == "mfma":
        big = p.passes == 8
        if c.cls in ("valu", "ds", "vmem") and p.wr & (c.rd | c.wr): n = max(n, 12 if big else 8)
        if c.cls == "mfma":
            if p.wr & (c.a | c.b): n = max(n, 12 if big else 8)
            if p.wr & c.c and not (p.wr == c.c and p.passes == c.passes): n = max(n, 10 if big else 6)
            if p.wr & c.wr and not (p.wr == c.c): n = max(n, 10 if big else 6)
        if c.cls == "valu" and p.c & c.wr: n = max(n, 7 if big else 3)
    if p.cls == "salu":
        if ("m0", 0) in p.wr and (c.lds_dma or "addtid" in c.op): n = max(n, 1)
    if p.cls == "vmem" and p.wide_store_data:
        if p.wide_store_data & c.wr: n = max(n, 2)
    return n

class Asm:
    def __init__(self):
        self.lines = []
        self.hist = []
        self.uid = 0
    def raw(self, text):
        self.lines.append(text)
    def comment(self, text):
        self.lines.append("    ; " + text)
    def label(self, name, fence=True):
        self.lines.append(name + ":")
    def newlabel(self, base):
        self.uid += 1
        return f"L_{base}_{self.uid}"
    def __call__(self, text):
        for t in text.strip().split("\n"):
            t = t.strip()
            if not t or t.startswith(";"): continue
            self._one(t)
    def _one(self, text):
        ins = Ins(text)
        dist = 0; req = 0
        for p in reversed(self.hist[-24:]):
            n = need(p, ins)
            if n > dist: req = max(req, n - dist)
            dist += p.states
            if dist >= 20: break
        while req > 0:
            k = min(req, 16)
            nop = Ins(f"s_nop {k-1}")
            self.lines.append(f"    s_nop {k-1}")
            self.hist.append(nop)
            req -= k
        self.lines.append("    " + text)
        self.hist.append(ins)
    def fence(self, n=12):
        self(f"s_nop {n-1}")
    def text(self):
        return "\n".join(self.lines) + "\n"
```

```python
import sys, os
sys.path.insert(0, os.path.dirname(os.path.abspath(__file__)))
from emit import Asm

KNAME = "sequential_preLN__compressed_kv_cla__swiglu_ffn__decode_kernel"
REF = "sequential_preLN__compressed_kv_cla__swiglu_ffn__decode.s.ref"

H1 = 0x1000
H2 = 0x50000
H4 = 0x80000
H5 = 0x90000
H6 = 0x98000
H3 = 0x100000
STAMP = 0x800000
WS_USED = 0x1000000
TAGK = 0x9E3779B1
MAXIT = 400000

S_X, S_CKV, S_WQ, S_WUK, S_WUV, S_WO, S_BX, S_WG, S_WU, S_WD, S_OUT, S_DBG, S_WS = [4 + 2 * i for i in range(13)]
SRD_WS, SRD_A, SRD_B, SRD_X, SRD_OUT = 32, 36, 40, 44, 48
S_TAG, S_WAVE, S_P0, S_P1, S_P2, S_P3 = 52, 53, 54, 55, 56, 57
S_T0, S_T1, S_T2, S_T3 = 58, 59, 60, 61
S_BAD = 62
S_CNT = 30
S_SELLO, S_SELHI, S_CK0, S_CK1 = 64, 65, 66, 67
S_TS0 = 68
S_M16 = 72
S_T4, S_T5, S_T6, S_T7 = 73, 74, 75, 76
S_STAMP = 78
NSTAMP = 12

def srd(n): return f"s[{n}:{n+3}]"
def vr(a, n): return f"v[{a}:{a+n-1}]"

class Gen:
    def __init__(self, stamps=False, stop_after=None):
        self.a = Asm()
        self.stamps = stamps
        self.stop_after = stop_after
        self.maxv = 0

    def stamp(self, i):
        if not self.stamps: return
        a = self.a
        a(f"s_memrealtime s[{S_STAMP+2*i}:{S_STAMP+2*i+1}]")
        a("s_waitcnt lgkmcnt(0)")

    def mk_srd(self, dst, ptr, size):
        a = self.a
        a(f"s_mov_b32 s{dst}, s{ptr}")
        a(f"s_and_b32 s{dst+1}, s{ptr+1}, 0xffff")
        a(f"s_mov_b32 s{dst+2}, {hex(size)}")
        a(f"s_mov_b32 s{dst+3}, 0x20000")

    def exec_lo4(self):
        self.a("s_mov_b32 exec_lo, 0x000f000f\ns_mov_b32 exec_hi, 0x000f000f")
    def exec_all(self):
        self.a("s_mov_b64 exec, -1")

    def transpose_x4(self, src, dst):
        a = self.a
        for jj in range(8):
            t, e = jj >> 1, jj & 1
            for u in range(4):
                a(f"v_perm_b32 v{dst+4*jj+u}, v{src+4*(2*u+1)+t}, v{src+4*(2*u)+t}, s{S_SELHI if e else S_SELLO}")

    def transpose_x1(self, src, dst):
        a = self.a
        for j in range(2):
            for u in range(4):
                a(f"v_perm_b32 v{dst+4*j+u}, v{src+2*u+1}, v{src+2*u}, s{S_SELHI if j else S_SELLO}")

    def tag24(self, dst, src, vtag):
        for r in range(4):
            self.a(f"v_perm_b32 v{dst+r}, v{src+r}, v{vtag}, s{S_TS0+r}")

    def sweep(self, loads, kind, vtag, vt0, vt1, vacc, pre=None):
        a = self.a
        lp = a.newlabel("poll"); ld = a.newlabel("pdone")
        a(f"s_mov_b32 s{S_CNT}, {MAXIT}")
        a.label(lp)
        for (d, vo, so, imm) in loads:
            a(f"buffer_load_dwordx4 {vr(d,4)}, v{vo}, {srd(SRD_WS)}, {so} offen offset:{imm} sc1")
        a("s_waitcnt vmcnt(0)")
        first = True
        for (d, vo, so, imm) in loads:
            if kind == "t32":
                src = d + 3
            else:
                a(f"v_perm_b32 v{vt0}, v{d+1}, v{d}, s{S_CK0}")
                a(f"v_perm_b32 v{vt1}, v{d+3}, v{d+2}, s{S_CK1}")
                a(f"v_or_b32 v{vt0}, v{vt0}, v{vt1}")
                src = vt0
            if first:
                a(f"v_xor_b32 v{vacc}, v{src}, v{vtag}"); first = False
            else:
                a(f"v_bitop3_b32 v{vacc}, v{vacc}, v{src}, v{vtag} bitop3:0xf6")
        a(f"v_cmp_ne_u32 vcc, 0, v{vacc}")
        a("s_and_b64 exec, exec, vcc")
        a(f"s_cbranch_scc0 {ld}")
        a(f"s_sub_u32 s{S_CNT}, s{S_CNT}, 1")
        a(f"s_cbranch_scc0 {lp}")
        a.label(ld)
        self.exec_all()

    def row_allreduce(self, op, v, tmp=None):
        for n in (8, 4, 2, 1):
            self.a(f"{op}_dpp v{v}, v{v}, v{v} row_ror:{n} row_mask:0xf bank_mask:0xf")

    def cross32_sum(self, regs, tmp):
        a = self.a
        for i, r in enumerate(regs):
            a(f"v_mov_b32 v{tmp+i}, v{r}")
        for i, r in enumerate(regs):
            a(f"v_permlane32_swap_b32 v{r}, v{tmp+i}")
        for i, r in enumerate(regs):
            a(f"v_add_f32 v{r}, v{r}, v{tmp+i}")

    def wave_allreduce_sum(self, v, tmp):
        a = self.a
        self.row_allreduce("v_add_f32", v)
        a(f"v_mov_b32 v{tmp}, v{v}")
        a(f"v_permlane16_swap_b32 v{v}, v{tmp}")
        a(f"v_add_f32 v{v}, v{v}, v{tmp}")
        a(f"v_mov_b32 v{tmp}, v{v}")
        a(f"v_permlane32_swap_b32 v{v}, v{tmp}")
        a(f"v_add_f32 v{v}, v{v}, v{tmp}")

    def round_bf16(self, v):
        self.a(f"v_cvt_pk_bf16_f32 v{v}, v{v}, v{v}")
        self.a(f"v_and_b32 v{v}, s{S_M16}, v{v}")

    def unpack(self, dst, src):
        self.a(f"v_lshlrev_b32 v{dst}, 16, v{src}")
        self.a(f"v_and_b32 v{dst+1}, s{S_M16}, v{src}")

    def finish(self):
        a = self.a
        if self.stamps:
            self.stamp(NSTAMP - 1)
            a("s_mov_b64 exec, 1")
            for i in range(NSTAMP):
                a(f"v_mov_b32 v{8+i}, s{S_STAMP+2*i}")
            a(f"s_lshl_b32 s{S_T0}, s2, 3")
            a(f"s_add_u32 s{S_T0}, s{S_T0}, s{S_WAVE}")
            a(f"s_lshl_b32 s{S_T0}, s{S_T0}, 6")
            a(f"s_add_u32 s{S_T0}, s{S_T0}, {hex(STAMP)}")
            a("v_mov_b32 v4, 0")
            for i in range(NSTAMP // 4):
                a(f"buffer_store_dwordx4 {vr(8+4*i,4)}, v4, {srd(SRD_WS)}, s{S_T0} offen offset:{16*i}")
        a("s_endpgm")

    def build(self):
        a = self.a
        hdr = open(REF).read().split("; @launch")[0]
        a.raw(hdr.rstrip("\n"))
        a.raw("; @launch grid=(256,1,1) block=(512,1,1) lds=163840")
        a.raw('.amdgcn_target "amdgcn-amd-amdhsa--gfx950"')
        a.raw(".text")
        a.raw(f".globl {KNAME}")
        a.raw(".p2align 8")
        a.raw(f".type {KNAME},@function")
        a.raw(f"{KNAME}:")
        a("s_cmp_ge_u32 s2, 256")
        a("s_cbranch_scc1 L_exit")
        a("s_load_dwordx16 s[4:19], s[0:1], 0")
        a("s_load_dwordx8 s[20:27], s[0:1], 64")
        a("s_load_dwordx2 s[28:29], s[0:1], 96")
        if self.stamps:
            for i in range(NSTAMP): a(f"s_mov_b32 s{S_STAMP+2*i}, 0")
        a("v_lshrrev_b32 v4, 6, v0")
        a("v_and_b32 v1, 63, v0")
        a(f"v_readfirstlane_b32 s{S_WAVE}, v4")
        a("v_lshrrev_b32 v2, 4, v1")
        a("v_and_b32 v3, 15, v1")
        a(f"s_mov_b32 s{S_SELLO}, 0x05040100")
        a(f"s_mov_b32 s{S_SELHI}, 0x07060302")
        a(f"s_mov_b32 s{S_CK0}, 0x0c0c0400")
        a(f"s_mov_b32 s{S_CK1}, 0x04000c0c")
        for r in range(4): a(f"s_mov_b32 s{S_TS0+r}, {hex(0x07060500 + r)}")
        a(f"s_mov_b32 s{S_M16}, 0xffff0000")
        a("v_mov_b32 v6, 0")
        a(f"s_and_b32 s{S_T0}, s2, 7")
        a(f"s_lshr_b32 s{S_T1}, s2, 4")
        a(f"s_lshl_b32 s{S_T0}, s{S_T0}, 4")
        a(f"s_add_u32 s{S_P0}, s{S_T0}, s{S_T1}")
        a("s_waitcnt lgkmcnt(0)")
        self.stamp(0)
        self.mk_srd(SRD_WS, S_WS, WS_USED)
        self.mk_srd(SRD_X, S_X, 4096)
        a(f"buffer_load_dword v5, v6, {srd(SRD_WS)}, 0 offen sc1")
        a("s_bitcmp1_b32 s2, 3")
        a("s_cbranch_scc1 L_T")
        self.build_W()
        a.label("L_T")
        self.build_T()
        a.label("L_exit")
        a("s_endpgm")
        a.raw('.section .rodata,"a"')
        a.raw(".p2align 6")
        a.raw(f".amdhsa_kernel {KNAME}")
        a.raw("  .amdhsa_next_free_vgpr 256")
        a.raw("  .amdhsa_next_free_sgpr 102")
        a.raw("  .amdhsa_accum_offset 256")
        a.raw("  .amdhsa_group_segment_fixed_size 0")
        a.raw("  .amdhsa_kernarg_size 104")
        a.raw("  .amdhsa_user_sgpr_count 2")
        a.raw("  .amdhsa_user_sgpr_kernarg_segment_ptr 1")
        a.raw("  .amdhsa_system_sgpr_workgroup_id_x 1")
        a.raw(".end_amdhsa_kernel")
        return a.text()

    def tag_ready(self):
        self.a(f"v_add_u32 v5, {hex(TAGK)}, v5")

    def build_W(self):
        a = self.a
        S_H, S_J = S_P1, S_P2
        a(f"s_lshr_b32 s{S_H}, s{S_P0}, 2")
        a(f"s_and_b32 s{S_J}, s{S_P0}, 3")
        a(f"s_cmp_ge_u32 s{S_WAVE}, 6")
        a("s_cbranch_scc1 L_W_red")
        a(f"s_cmp_ge_u32 s{S_WAVE}, 4")
        a("s_cbranch_scc1 L_W_qa")
        self.mk_srd(SRD_A, S_WQ, 4 << 20)
        XS, XO, WR, WT, ACC = 8, 24, 32, 64, 96
        U = 128
        a("v_lshlrev_b32 v7, 10, v2")
        a("v_lshl_add_u32 v7, v3, 4, v7")
        for i in range(4):
            a(f"buffer_load_dwordx4 {vr(XS+4*i,4)}, v7, {srd(SRD_X)}, 0 offen offset:{256*i}")
        a("v_and_b32 v28, 3, v3")
        a("v_lshlrev_b32 v28, 10, v28")
        a("v_lshl_add_u32 v28, v2, 4, v28")
        a(f"s_lshl_b32 s{S_T0}, s{S_J}, 2")
        a(f"s_add_u32 s{S_T0}, s{S_T0}, s{S_WAVE}")
        a(f"s_lshl_b32 s{S_T1}, s{S_T0}, 6")
        a(f"buffer_load_dwordx4 {vr(XO,4)}, v28, {srd(SRD_X)}, s{S_T1} offen")
        a("v_and_b32 v29, 3, v3")
        a("v_lshlrev_b32 v29, 2, v29")
        a("v_lshrrev_b32 v30, 2, v3")
        a("v_add_u32 v29, v29, v30")
        a("v_lshlrev_b32 v29, 4, v29")
        a("v_lshl_add_u32 v29, v2, 16, v29")
        a(f"s_lshl_b32 s{S_T1}, s{S_T0}, 18")
        a(f"s_lshl_b32 s{S_T2}, s{S_H}, 8")
        a(f"s_add_u32 s{S_T1}, s{S_T1}, s{S_T2}")
        for i in range(8):
            a(f"buffer_load_dwordx4 {vr(WR+4*i,4)}, v29, {srd(SRD_A)}, s{S_T1} offen nt")
            if i < 7: a(f"s_add_u32 s{S_T1}, s{S_T1}, 8192")
        a("s_waitcnt vmcnt(8)")
        self.stamp(1)
        for i in range(16): self.unpack(U + 2 * i, XS + i)
        a(f"v_add_f32 v31, v{U}, v{U+1}")
        for i in range(2, 32): a(f"v_add_f32 v31, v31, v{U+i}")
        self.row_allreduce("v_add_f32", 31)
        a("v_mul_f32 v31, 0x3b000000, v31")
        for i in range(32): a(f"v_sub_f32 v{U+i}, v{U+i}, v31")
        a(f"v_mul_f32 v30, v{U}, v{U}")
        for i in range(1, 32): a(f"v_fmac_f32 v30, v{U+i}, v{U+i}")
        self.row_allreduce("v_add_f32", 30)
        a("v_mul_f32 v30, 0x3b000000, v30")
        self.ln_finish(31, 30)
        a("v_and_b32 v29, 3, v3")
        a("v_lshlrev_b32 v29, 6, v29")
        a("ds_bpermute_b32 v31, v29, v31")
        a("ds_bpermute_b32 v30, v29, v30")
        for i in range(4): self.unpack(U + 2 * i, XO + i)
        a("s_waitcnt lgkmcnt(0)")
        self.ln_apply(U, XO, 31, 30)
        a("s_waitcnt vmcnt(0)")
        self.stamp(2)
        self.transpose_x4(WR, WT)
        for jj in range(8):
            a(f"v_mfma_f32_16x16x32_bf16 {vr(ACC+4*jj,4)}, {vr(WT+4*jj,4)}, {vr(XO,4)}, 0")
        a("v_lshlrev_b32 v29, 6, v2")
        a("v_lshl_add_u32 v29, v3, 4, v29")
        a(f"s_lshl_b32 s{S_T0}, s{S_WAVE}, 11")
        a(f"v_add_u32 v29, s{S_T0}, v29")
        self.exec_lo4()
        for jj in range(8):
            a(f"ds_write_b128 v29, {vr(ACC+4*jj,4)} offset:{256*jj}")
        self.exec_all()
        self.tag_ready()
        a("s_waitcnt lgkmcnt(0)")
        a("s_barrier")
        a("s_branch L_W_join")
        a.label("L_W_red")
        a(f"s_sub_u32 s{S_T0}, s{S_WAVE}, 6")
        a(f"s_lshl_b32 s{S_T0}, s{S_T0}, 10")
        a("v_lshlrev_b32 v7, 4, v1")
        a(f"v_add_u32 v7, s{S_T0}, v7")
        a(f"s_lshl_b32 s{S_T1}, s{S_P0}, 11")
        a(f"s_add_u32 s{S_T1}, s{S_T1}, {hex(H1)}")
        a("s_waitcnt vmcnt(0)")
        self.tag_ready()
        a("s_barrier")
        for p in range(4):
            a(f"ds_read_b128 {vr(8+4*p,4)}, v7 offset:{2048*p}")
        a("s_waitcnt lgkmcnt(0)")
        for r in range(4):
            a(f"v_add_f32 v{8+r}, v{8+r}, v{12+r}")
            a(f"v_add_f32 v{16+r}, v{16+r}, v{20+r}")
        for r in range(4):
            a(f"v_add_f32 v{8+r}, v{8+r}, v{16+r}")
        self.tag24(12, 8, 5)
        a(f"buffer_store_dwordx4 {vr(12,4)}, v7, {srd(SRD_WS)}, s{S_T1} offen sc1")
        self.stamp(3)
        a("s_branch L_W_join")
        a.label("L_W_qa")
        self.mk_srd(SRD_A, S_WUK, 4 << 20)
        WK, G, BF, ACC, OUT = 8, 72, 104, 120, 136
        a("v_lshrrev_b32 v7, 2, v3")
        a("v_lshlrev_b32 v7, 4, v7")
        a("v_and_b32 v148, 3, v3")
        a("v_add_u32 v7, v7, v148")
        a("v_lshlrev_b32 v7, 13, v7")
        a("v_lshl_add_u32 v7, v2, 4, v7")
        a(f"s_lshl_b32 s{S_T0}, s{S_J}, 1")
        a(f"s_add_u32 s{S_T0}, s{S_T0}, s{S_WAVE}")
        a(f"s_sub_u32 s{S_T0}, s{S_T0}, 4")
        a(f"s_lshl_b32 s{S_T1}, s{S_T0}, 19")
        a(f"s_lshl_b32 s{S_T2}, s{S_H}, 8")
        a(f"s_add_u32 s{S_T1}, s{S_T1}, s{S_T2}")
        for t in range(4):
            for r in range(4):
                a(f"buffer_load_dwordx4 {vr(WK+16*t+4*r,4)}, v7, {srd(SRD_A)}, s{S_T1} offen offset:{64*r} nt")
            if t < 3: a(f"s_add_u32 s{S_T1}, s{S_T1}, {4*8192}")
        a("v_lshrrev_b32 v149, 2, v3")
        a("v_lshlrev_b32 v149, 11, v149")
        a("v_lshl_add_u32 v149, v2, 6, v149")
        a("v_lshl_add_u32 v149, v148, 4, v149")
        a(f"s_lshl_b32 s{S_T2}, s{S_H}, 13")
        a(f"s_add_u32 s{S_T2}, s{S_T2}, {hex(H1)}")
        a("v_mul_u32_u24 v150, 0xc000, v148")
        a("v_lshl_add_u32 v150, v2, 4, v150")
        a(f"s_lshl_b32 s{S_T3}, s{S_H}, 9")
        a(f"s_lshl_b32 s{S_T0}, s{S_T0}, 6")
        a(f"s_add_u32 s{S_T3}, s{S_T3}, s{S_T0}")
        a(f"s_add_u32 s{S_T3}, s{S_T3}, {hex(H2)}")
        a(f"s_add_u32 s{S_T4}, s{S_T3}, 16384")
        a(f"s_add_u32 s{S_T5}, s{S_T3}, 32768")
        a("s_waitcnt vmcnt(16)")
        self.tag_ready()
        for g in range(3): a(f"v_mov_b32 v{OUT+4*g+3}, v5")
        a(f"v_mov_b32 v{OUT+10}, 0")
        a("s_barrier")
        self.stamp(1)
        self.sweep([(G + 4 * jj, 149, f"s{S_T2}", 256 * jj) for jj in range(8)], "f24", 5, 151, 152, 153)
        self.stamp(2)
        for r in range(4):
            for u in range(4):
                a(f"v_cvt_pk_bf16_f32 v{BF+4*r+u}, v{G+4*(2*u)+r}, v{G+4*(2*u+1)+r}")
        for r in range(4):
            for t in range(4):
                c = "0" if r == 0 else vr(ACC + 4 * t, 4)
                a(f"v_mfma_f32_16x16x32_bf16 {vr(ACC+4*t,4)}, {vr(WK+16*t+4*r,4)}, {vr(BF+4*r,4)}, {c}")
        for n in (4, 8):
            for i in range(16):
                a(f"v_add_f32_dpp v{ACC+i}, v{ACC+i}, v{ACC+i} row_ror:{n} row_mask:0xf bank_mask:0xf")
        self.pack_item(OUT, ACC)
        self.exec_lo4()
        for g, s in enumerate((S_T3, S_T4, S_T5)):
            a(f"buffer_store_dwordx4 {vr(OUT+4*g,4)}, v150, {srd(SRD_WS)}, s{s} offen sc1")
        self.exec_all()
        self.stamp(3)
        a.label("L_W_join")
        a("s_barrier")
        if self.stop_after == "A":
            self.finish(); return
        self.build_C()

    def pack_item(self, OUT, ACC):
        pos = {0: 0, 1: 1, 2: 2, 3: 8, 4: 4, 5: 5, 6: 6, 7: 9}
        for d in range(8):
            self.a(f"v_cvt_pk_bf16_f32 v{OUT+pos[d]}, v{ACC+2*d}, v{ACC+2*d+1}")

    def ln_finish(self, vm, vv):
        a = self.a
        self.round_bf16(vm)
        self.round_bf16(vv)
        a(f"v_add_f32 v{vv}, 0x3727c5ac, v{vv}")
        self.round_bf16(vv)
        a(f"v_sqrt_f32 v{vv}, v{vv}")
        self.round_bf16(vv)
        a(f"v_rcp_f32 v{vv}, v{vv}")

    def ln_apply(self, U, OUT, vm, vr_):
        a = self.a
        for i in range(8): a(f"v_sub_f32 v{U+i}, v{U+i}, v{vm}")
        for i in range(4): a(f"v_cvt_pk_bf16_f32 v{OUT+i}, v{U+2*i}, v{U+2*i+1}")
        for i in range(4): self.unpack(U + 2 * i, OUT + i)
        for i in range(8): a(f"v_mul_f32 v{U+i}, v{U+i}, v{vr_}")
        for i in range(4): a(f"v_cvt_pk_bf16_f32 v{OUT+i}, v{U+2*i}, v{U+2*i+1}")

    def build_C(self):
        a = self.a
        S_H, S_J = S_P1, S_P2
        WR, WT, G, ACC, U, AF = 8, 72, 136, 160, 192, 200
        self.mk_srd(SRD_A, S_WUV, 4 << 20)
        a("v_lshrrev_b32 v7, 1, v2")
        a("v_lshlrev_b32 v7, 18, v7")
        a("v_and_b32 v208, 1, v2")
        a("v_lshl_add_u32 v7, v208, 15, v7")
        a("v_lshl_add_u32 v7, v3, 4, v7")
        a(f"s_lshl_b32 s{S_T0}, s{S_WAVE}, 19")
        a(f"s_lshl_b32 s{S_T1}, s{S_H}, 8")
        a(f"s_add_u32 s{S_T0}, s{S_T0}, s{S_T1}")
        for e in range(2):
            for i in range(8):
                row = 16 * e + 8 * (i >> 2) + (i & 3)
                a(f"s_add_u32 s{S_T1}, s{S_T0}, {row*8192}")
                a(f"buffer_load_dwordx4 {vr(WR+32*e+4*i,4)}, v7, {srd(SRD_A)}, s{S_T1} offen nt")
        a("v_lshlrev_b32 v209, 6, v3")
        a("v_lshl_add_u32 v209, v2, 4, v209")
        a(f"s_lshl_b32 s{S_T0}, s{S_J}, 5")
        a(f"s_add_u32 s{S_T0}, s{S_T0}, s{S_H}")
        a(f"s_mul_i32 s{S_T0}, s{S_T0}, 49152")
        a(f"s_lshl_b32 s{S_T1}, s{S_WAVE}, 11")
        a(f"s_add_u32 s{S_T0}, s{S_T0}, s{S_T1}")
        a(f"s_add_u32 s{S_T3}, s{S_T0}, {hex(H3)}")
        a(f"s_add_u32 s{S_T4}, s{S_T3}, 16384")
        a(f"s_add_u32 s{S_T5}, s{S_T3}, 32768")
        a("s_waitcnt vmcnt(8)")
        self.transpose_x4(WR, WT)
        a("s_waitcnt vmcnt(0)")
        self.transpose_x4(WR + 32, WT + 32)
        self.stamp(4)
        loads = []
        for z in range(2):
            for g, s in enumerate((S_T3, S_T4, S_T5)):
                loads.append((G + 12 * z + 4 * g, 209, f"s{s}", 1024 * z))
        self.sweep(loads, "t32", 5, 210, 211, 212)
        self.stamp(5)
        L0, L1 = G + 10, G + 22
        a(f"v_max_f32 v210, v{L0}, v{L1}")
        self.row_allreduce("v_max_f32", 210)
        a(f"v_sub_f32 v{L0}, v{L0}, v210")
        a(f"v_sub_f32 v{L1}, v{L1}, v210")
        a(f"v_exp_f32 v212, v{L0}")
        a(f"v_exp_f32 v214, v{L1}")
        a("v_add_f32 v210, v212, v214")
        self.row_allreduce("v_add_f32", 210)
        a("v_rcp_f32 v210, v210")
        a("v_mul_f32 v212, v212, v210")
        a("v_mul_f32 v214, v214, v210")
        pos = {0: 0, 1: 1, 2: 2, 3: 8, 4: 4, 5: 5, 6: 6, 7: 9}
        for d in range(8):
            t = U + 4 * (d & 1)
            self.unpack(t, G + pos[d])
            self.unpack(t + 2, G + 12 + pos[d])
            a(f"v_pk_mul_f32 {vr(t,2)}, {vr(t,2)}, v[212:213] op_sel_hi:[1,0]")
            a(f"v_pk_fma_f32 {vr(t,2)}, {vr(t+2,2)}, v[214:215], {vr(t,2)} op_sel_hi:[1,0,1]")
            a(f"v_cvt_pk_bf16_f32 v{AF+d}, v{t}, v{t+1}")
        for e in range(2):
            for jj in range(8):
                c = "0" if e == 0 else vr(ACC + 4 * jj, 4)
                a(f"v_mfma_f32_16x16x32_bf16 {vr(ACC+4*jj,4)}, {vr(AF+4*e,4)}, {vr(WT+32*e+4*jj,4)}, {c}")
        for jj in range(8):
            a(f"v_add_f32 v{ACC+4*jj}, v{ACC+4*jj}, v{ACC+4*jj+1}")
            a(f"v_add_f32 v{ACC+4*jj+2}, v{ACC+4*jj+2}, v{ACC+4*jj+3}")
        for jj in range(8):
            a(f"v_add_f32 v{216+4*(jj&1)+(jj>>1)}, v{ACC+4*jj}, v{ACC+4*jj+2}")
        for u in range(4): a(f"v_permlane32_swap_b32 v{216+u}, v{220+u}")
        for u in range(4): a(f"v_add_f32 v{216+u}, v{216+u}, v{220+u}")
        a("v_lshlrev_b32 v7, 4, v0")
        a("ds_write_b128 v7, v[216:219]")
        a("s_waitcnt lgkmcnt(0)")
        a("s_barrier")
        a(f"s_cmp_lg_u32 s{S_WAVE}, 0")
        a("s_cbranch_scc1 L_C_done")
        a("v_lshrrev_b32 v7, 5, v1")
        a("v_lshlrev_b32 v7, 12, v7")
        a("v_lshl_add_u32 v7, v208, 9, v7")
        a("v_lshl_add_u32 v7, v3, 4, v7")
        for aa in range(4):
            for hp in range(2):
                a(f"ds_read_b128 {vr(8+8*aa+4*hp,4)}, v7 offset:{1024*aa+256*hp}")
        a("v_and_b32 v7, 31, v1")
        a("v_lshlrev_b32 v7, 4, v7")
        a(f"s_lshl_b32 s{S_T0}, s{S_P0}, 9")
        a(f"s_add_u32 s{S_T0}, s{S_T0}, {hex(H4)}")
        a("s_waitcnt lgkmcnt(0)")
        for st in (16, 8, 4):
            for base in range(0, st, 2):
                a(f"v_pk_add_f32 {vr(8+base,2)}, {vr(8+base,2)}, {vr(8+st+base,2)}")
        self.cross32_sum([8, 9, 10, 11], 12)
        self.tag24(16, 8, 5)
        a("s_mov_b32 exec_hi, 0")
        a(f"buffer_store_dwordx4 v[16:19], v7, {srd(SRD_WS)}, s{S_T0} offen sc1")
        self.exec_all()
        self.stamp(6)
        a.label("L_C_done")
        if self.stop_after == "C":
            self.finish(); return
        a(f"s_and_b32 s{S_T0}, s{S_P0}, 7")
        a(f"s_cmp_lg_u32 s{S_T0}, 0")
        a("s_cbranch_scc1 L_W_end")
        a("s_barrier")
        self.build_F()
        a.label("L_W_end")
        self.finish()

    def gemv32_load(self, srdn, WR, nks, rowbytes, s_base, vtmp):
        a = self.a
        a(f"v_mul_u32_u24 v{vtmp}, {8*rowbytes}, v2")
        a(f"v_lshl_add_u32 v{vtmp}, v3, 2, v{vtmp}")
        for ks in range(nks):
            for i in range(8):
                off = (32 * ks + i) * rowbytes
                a(f"s_add_u32 s{S_T7}, s{s_base}, {off}")
                a(f"buffer_load_dword v{WR+8*ks+i}, v{vtmp}, {srd(srdn)}, s{S_T7} offen nt")

    def gemv32_partial_write(self, ACC, vtmp):
        a = self.a
        a(f"v_lshlrev_b32 v{vtmp}, 7, v3")
        a(f"v_lshl_add_u32 v{vtmp}, v2, 4, v{vtmp}")
        a(f"s_lshl_b32 s{S_T7}, s{S_WAVE}, 9")
        a(f"v_add_u32 v{vtmp}, s{S_T7}, v{vtmp}")
        self.exec_lo4()
        for j in range(2):
            a(f"ds_write_b128 v{vtmp}, {vr(ACC+4*j,4)} offset:{64*j}")
        self.exec_all()
        a("s_waitcnt lgkmcnt(0)")
        a("s_barrier")

    def gemv32_reduce(self, R, vtmp):
        a = self.a
        a(f"v_lshrrev_b32 v{vtmp}, 5, v1")
        a(f"v_lshlrev_b32 v{vtmp}, 11, v{vtmp}")
        a(f"v_and_b32 v{R}, 31, v1")
        a(f"v_lshl_add_u32 v{vtmp}, v{R}, 4, v{vtmp}")
        for aa in range(4):
            a(f"ds_read_b128 {vr(R+4*aa,4)}, v{vtmp} offset:{512*aa}")
        a("s_waitcnt lgkmcnt(0)")
        for st in (8, 4):
            for base in range(0, st, 2):
                a(f"v_pk_add_f32 {vr(R+base,2)}, {vr(R+base,2)}, {vr(R+st+base,2)}")

    def frag_from_v(self, dst, g0, g1):
        for r in range(4):
            self.a(f"v_cvt_pk_bf16_f32 v{dst+r}, v{g0+r}, v{g1+r}")

    def build_F(self):
        a = self.a
        S_MS = S_P3
        WR, WT, G, BF, ACC, R, HH = 8, 64, 120, 176, 204, 212, 228
        a(f"s_lshr_b32 s{S_MS}, s{S_P0}, 3")
        self.mk_srd(SRD_A, S_WD, 1792 * 1024)
        self.mk_srd(SRD_OUT, S_OUT, 4096)
        a(f"s_mul_i32 s{S_T0}, s{S_WAVE}, {224*1024}")
        a(f"s_lshl_b32 s{S_T1}, s{S_MS}, 6")
        a(f"s_add_u32 s{S_T0}, s{S_T0}, s{S_T1}")
        self.gemv32_load(SRD_A, WR, 7, 1024, S_T0, 7)
        a("v_bfe_u32 v244, v1, 3, 2")
        a("v_bfe_u32 v245, v1, 2, 1")
        a("v_and_b32 v246, 3, v1")
        a("v_lshlrev_b32 v247, 10, v244")
        a("v_lshl_add_u32 v247, v246, 4, v247")
        a(f"buffer_load_dwordx4 v[248:251], v247, {srd(SRD_X)}, s{S_T1} offen")
        a("v_lshlrev_b32 v252, 11, v244")
        a("v_lshl_add_u32 v252, v245, 10, v252")
        a("v_lshl_add_u32 v252, v246, 4, v252")
        for kg in range(4):
            a(f"s_add_u32 s{S_T2+kg if kg<2 else S_T4+kg-2}, s{S_T1}, {hex(H5 + kg*8192)}")
        a("v_and_b32 v253, 3, v3")
        a("v_mul_u32_u24 v253, 7168, v253")
        a("v_lshl_add_u32 v253, v2, 4, v253")
        a(f"s_mul_i32 s{S_T6}, s{S_WAVE}, 448")
        a(f"s_add_u32 s{S_T6}, s{S_T6}, {hex(H6)}")
        a("s_waitcnt vmcnt(0)")
        for ks in range(7): self.transpose_x1(WR + 8 * ks, WT + 8 * ks)
        self.stamp(7)
        a(f"s_cmp_lg_u32 s{S_WAVE}, 0")
        a("s_cbranch_scc1 L_F_noh")
        self.sweep([(G + 4 * kg, 252, f"s{S_T2+kg if kg<2 else S_T4+kg-2}", 0) for kg in range(4)], "f24", 5, 240, 241, 242)
        for st in (8, 4):
            for base in range(0, st, 2):
                a(f"v_pk_add_f32 {vr(G+base,2)}, {vr(G+base,2)}, {vr(G+st+base,2)}")
        a("v_lshlrev_b32 v240, 4, v245")
        a("v_sub_u32 v240, 16, v240")
        for r in range(4):
            self.round_bf16(G + r)
            a(f"v_lshlrev_b32 v{HH+r}, v240, v{248+r}")
            a(f"v_and_b32 v{HH+r}, s{S_M16}, v{HH+r}")
            a(f"v_add_f32 v{HH+r}, v{HH+r}, v{G+r}")
            self.round_bf16(HH + r)
        a.label("L_F_noh")
        self.stamp(8)
        loads = []
        for ks in range(7):
            for j in range(2):
                loads.append((G + 8 * ks + 4 * j, 253, f"s{S_T6}", 3584 * j + 64 * ks))
        self.sweep(loads, "f24", 5, 240, 241, 242)
        self.stamp(9)
        for ks in range(7): self.frag_from_v(BF + 4 * ks, G + 8 * ks, G + 8 * ks + 4)
        for ks in range(7):
            for j in range(2):
                c = "0" if ks == 0 else vr(ACC + 4 * j, 4)
                a(f"v_mfma_f32_16x16x32_bf16 {vr(ACC+4*j,4)}, {vr(WT+8*ks+4*j,4)}, {vr(BF+4*ks,4)}, {c}")
        self.gemv32_partial_write(ACC, 7)
        a(f"s_cmp_lg_u32 s{S_WAVE}, 0")
        a("s_cbranch_scc1 L_F_done")
        self.gemv32_reduce(R, 7)
        self.cross32_sum([R, R + 1, R + 2, R + 3], R + 4)
        for r in range(4):
            self.round_bf16(R + r)
            a(f"v_add_f32 v{R+r}, v{R+r}, v{HH+r}")
        for r in range(4):
            a(f"v_mov_b32_dpp v{R+4+r}, v{R+r} row_shl:4 row_mask:0xf bank_mask:0xf")
        for r in range(4):
            a(f"v_cvt_pk_bf16_f32 v{R+8+r}, v{R+r}, v{R+4+r}")
        a("s_mov_b64 exec, 0x0f0f0f0f")
        a(f"buffer_store_dwordx4 {vr(R+8,4)}, v247, {srd(SRD_OUT)}, s{S_T1} offen")
        a(f"s_cmp_lg_u32 s{S_MS}, 0")
        a("s_cbranch_scc1 L_F_done")
        a("s_mov_b64 exec, 1")
        a(f"buffer_store_dword v5, v6, {srd(SRD_WS)}, 0 offen sc1")
        a.label("L_F_done")
        self.exec_all()

    def build_T(self):
        a = self.a
        S_B, S_S = S_P1, S_P2
        QB = 131072
        a(f"s_lshr_b32 s{S_B}, s{S_P0}, 5")
        a(f"s_and_b32 s{S_S}, s{S_P0}, 31")
        self.mk_srd(SRD_A, S_CKV, 16 << 20)
        a("v_lshlrev_b32 v7, 2, v2")
        a("v_xor_b32 v7, v7, v3")
        a("v_lshlrev_b32 v7, 4, v7")
        a("v_lshl_add_u32 v8, v2, 10, v7")
        for e in range(1, 4): a(f"v_xor_b32 v{8+e}, {16*e}, v8")
        a(f"s_lshl_b32 s{S_T0}, s{S_P0}, 17")
        a(f"s_lshl_b32 s{S_T1}, s{S_WAVE}, 14")
        a(f"s_add_u32 s{S_T0}, s{S_T0}, s{S_T1}")
        a(f"s_lshl_b32 s{S_T1}, s{S_WAVE}, 12")
        for q in range(4):
            for e in range(4):
                a(f"s_add_u32 m0, s{S_T1}, {q*32768 + e*1024}")
                a(f"s_add_u32 s{S_T2}, s{S_T0}, {e*4096 + q*256}")
                a(f"buffer_load_dwordx4 v{8+e}, {srd(SRD_A)}, s{S_T2} offen nt lds")
        self.stamp(1)
        G = 16
        a("v_lshlrev_b32 v12, 4, v0")
        a(f"s_mul_i32 s{S_T0}, s{S_B}, 49152")
        a(f"s_add_u32 s{S_T0}, s{S_T0}, {hex(H2)}")
        offs = [S_T0, S_T1, S_T2, S_T3, S_T4, S_T5]
        for n in range(1, 6):
            rep, g = n // 3, n % 3
            a(f"s_add_u32 s{offs[n]}, s{S_T0}, {g*16384 + rep*8192}")
        a("v_lshrrev_b32 v13, 5, v0")
        a("v_and_b32 v14, 3, v13")
        a("v_lshlrev_b32 v14, 2, v14")
        a("v_lshrrev_b32 v15, 2, v13")
        a("v_or_b32 v14, v14, v15")
        a("v_and_b32 v15, 7, v0")
        a("v_lshlrev_b32 v15, 1, v15")
        a("v_xor_b32 v14, v14, v15")
        a("v_lshlrev_b32 v14, 4, v14")
        a("v_lshl_add_u32 v14, v13, 8, v14")
        a("v_bfe_u32 v15, v0, 3, 2")
        a("v_lshl_add_u32 v14, v15, 13, v14")
        a(f"v_add_u32 v14, {QB}, v14")
        a("v_xor_b32 v15, 16, v14")
        a("s_waitcnt vmcnt(16)")
        self.tag_ready()
        self.sweep([(G + 4 * n, 12, f"s{offs[n]}", 0) for n in range(6)], "t32", 5, 40, 41, 42)
        self.stamp(2)
        for rep in range(2):
            b = G + 12 * rep
            a(f"v_mov_b32 v{b+3}, v{b+8}")
            a(f"v_mov_b32 v{b+7}, v{b+9}")
            a(f"ds_write_b128 v14, {vr(b,4)} offset:{4096*rep}")
            a(f"ds_write_b128 v15, {vr(b+4,4)} offset:{4096*rep}")
        a("v_and_b32 v44, 31, v1")
        a("v_lshrrev_b32 v45, 5, v1")
        a("v_and_b32 v46, 3, v1")
        a("v_lshlrev_b32 v46, 2, v46")
        a("v_bfe_u32 v47, v1, 2, 2")
        a("v_or_b32 v46, v46, v47")
        a("v_xor_b32 v46, v46, v45")
        a("v_lshlrev_b32 v46, 4, v46")
        a("v_lshl_add_u32 v46, v44, 8, v46")
        RC, RQ = 48, 56
        a(f"s_and_b32 s{S_T6}, s{S_WAVE}, 3")
        a(f"s_lshl_b32 s{S_T6}, s{S_T6}, 13")
        for t in range(8):
            a(f"v_xor_b32 v{RQ+t}, {32*t}, v46")
        for t in range(8):
            a(f"v_add_u32 v{RC+t}, s{S_T6}, v{RQ+t}")
            a(f"v_add_u32 v{RQ+t}, {QB}, v{RQ+t}")
        a("s_waitcnt vmcnt(0) lgkmcnt(0)")
        a("s_barrier")
        self.stamp(3)
        MX, PB, LB = QB, QB + 2048, QB + 1024
        SC = 64
        FA, FB = 80, 112
        a(f"s_cmp_ge_u32 s{S_WAVE}, 4")
        a("s_cbranch_scc1 L_T_idle")
        def rd(q):
            for t in range(8):
                a(f"ds_read_b128 {vr(FA+64*(q&1)+4*t,4)}, v{RC+t} offset:{32768*(q&1)}")
                a(f"ds_read_b128 {vr(FB+64*(q&1)+4*t,4)}, v{RQ+t} offset:{8192*q}")
        def mm(q, pending):
            for t in range(8):
                a(f"s_waitcnt lgkmcnt({min(15, pending + 2*(7-t))})")
                c = "0" if (q == 0 and t == 0) else vr(SC, 16)
                a(f"v_mfma_f32_32x32x16_bf16 {vr(SC,16)}, {vr(FA+64*(q&1)+4*t,4)}, {vr(FB+64*(q&1)+4*t,4)}, {c}")
        rd(0)
        mm(0, 0)
        rd(1)
        for t in range(8): a(f"v_add_u32 v{RC+t}, 0x10000, v{RC+t}")
        mm(1, 0)
        a("s_barrier")
        rd(2)
        mm(2, 0)
        rd(3)
        mm(3, 0)
        a(f"v_max3_f32 v40, v{SC}, v{SC+1}, v{SC+2}")
        for i in range(3, 15, 2): a(f"v_max3_f32 v40, v40, v{SC+i}, v{SC+i+1}")
        a(f"v_max_f32 v40, v40, v{SC+15}")
        a("v_lshlrev_b32 v41, 5, v44")
        a(f"v_add_u32 v41, {MX}, v41")
        a("v_lshl_add_u32 v42, v45, 2, v41")
        a(f"s_lshl_b32 s{S_T6}, s{S_WAVE}, 3")
        a(f"v_add_u32 v42, s{S_T6}, v42")
        a("ds_write_b32 v42, v40")
        a("s_waitcnt lgkmcnt(0)")
        a("s_barrier")
        a("ds_read_b128 v[16:19], v41")
        a("ds_read_b128 v[20:23], v41 offset:16")
        a(f"s_mov_b32 s{S_T7}, 0x3e0293ee")
        a("s_waitcnt lgkmcnt(0)")
        a("v_max3_f32 v40, v16, v17, v18")
        a("v_max3_f32 v40, v40, v19, v20")
        a("v_max3_f32 v40, v40, v21, v22")
        a("v_max_f32 v40, v40, v23")
        a(f"v_mul_f32 v40, s{S_T7}, v40")
        for i in range(16): a(f"v_fma_f32 v{SC+i}, v{SC+i}, s{S_T7}, -v40")
        for i in range(16): a(f"v_exp_f32 v{SC+i}, v{SC+i}")
        for i in range(8): a(f"v_cvt_pk_bf16_f32 v{16+i}, v{SC+2*i}, v{SC+2*i+1}")
        a(f"v_add_f32 v43, v{SC}, v{SC+1}")
        for i in range(2, 16): a(f"v_add_f32 v43, v43, v{SC+i}")
        a("v_lshlrev_b32 v24, 4, v1")
        a(f"s_lshl_b32 s{S_T6}, s{S_WAVE}, 11")
        a(f"s_add_u32 s{S_T6}, s{S_T6}, {PB}")
        a(f"v_add_u32 v24, s{S_T6}, v24")
        a("ds_write_b128 v24, v[16:19]")
        a("ds_write_b128 v24, v[20:23] offset:1024")
        a(f"ds_write_b32 v42, v43 offset:{LB-MX}")
        a("s_waitcnt lgkmcnt(0)")
        a("s_branch L_T_pv")
        a.label("L_T_idle")
        a("s_barrier")
        a("v_lshlrev_b32 v41, 5, v44")
        a(f"v_add_u32 v41, {MX}, v41")
        a(f"s_mov_b32 s{S_T7}, 0x3e0293ee")
        a("s_barrier")
        a.label("L_T_pv")
        TA = 26
        a("v_bfe_u32 v30, v1, 2, 2")
        a("v_bfe_u32 v31, v1, 1, 1")
        a("v_bfe_u32 v32, v1, 4, 1")
        a("v_lshl_add_u32 v31, v32, 1, v31")
        a("v_xor_b32 v31, v31, v45")
        a("v_lshl_add_u32 v31, v30, 2, v31")
        a("v_lshlrev_b32 v31, 4, v31")
        a("v_and_b32 v32, 1, v1")
        a("v_lshl_add_u32 v31, v32, 3, v31")
        a("v_lshl_add_u32 v32, v45, 2, v30")
        a("v_lshl_add_u32 v31, v32, 8, v31")
        a(f"s_lshr_b32 s{S_T0}, s{S_WAVE}, 1")
        a(f"s_lshl_b32 s{S_T0}, s{S_T0}, 15")
        a(f"s_and_b32 s{S_T1}, s{S_WAVE}, 1")
        a(f"s_lshl_b32 s{S_T1}, s{S_T1}, 7")
        a(f"v_xor_b32 v31, s{S_T1}, v31")
        a(f"v_add_u32 v31, s{S_T0}, v31")
        for mi in range(2):
            for aa in range(2):
                a(f"v_xor_b32 v{TA+2*mi+aa}, {64*mi + 32*aa}, v31")
        a("v_mul_u32_u24 v33, 0xc000, v44")
        a("v_lshl_add_u32 v33, v45, 4, v33")
        a(f"s_mul_i32 s{S_T0}, s{S_B}, {32*49152}")
        a(f"s_lshl_b32 s{S_T1}, s{S_WAVE}, 11")
        a(f"s_add_u32 s{S_T0}, s{S_T0}, s{S_T1}")
        a(f"s_lshl_b32 s{S_T1}, s{S_S}, 6")
        a(f"s_add_u32 s{S_T0}, s{S_T0}, s{S_T1}")
        a(f"s_add_u32 s{S_T3}, s{S_T0}, {hex(H3)}")
        a(f"s_add_u32 s{S_T4}, s{S_T3}, 16384")
        a(f"s_add_u32 s{S_T5}, s{S_T3}, 32768")
        a("v_lshlrev_b32 v24, 4, v1")
        a(f"v_add_u32 v24, {PB}, v24")
        a("s_barrier")
        self.stamp(4)
        PF, AFR, OA, OUT = 64, 96, 160, 192
        for u in range(8): a(f"ds_read_b128 {vr(PF+4*u,4)}, v24 offset:{1024*u}")
        a("ds_read_b128 v[16:19], v41")
        a("ds_read_b128 v[20:23], v41 offset:16")
        a(f"ds_read_b128 v[34:37], v41 offset:{LB-MX}")
        a(f"ds_read_b128 v[48:51], v41 offset:{LB-MX+16}")
        a("s_waitcnt lgkmcnt(0)")
        for mi in range(2):
            for u in range(8):
                for aa in range(2):
                    a(f"ds_read_b64_tr_b16 {vr(AFR+32*mi+4*u+2*aa,2)}, v{TA+2*mi+aa} offset:{4096*u + 2048*aa}")
            if mi == 0:
                a("v_max3_f32 v40, v16, v17, v18")
                a("v_max3_f32 v40, v40, v19, v20")
                a("v_max3_f32 v40, v40, v21, v22")
                a("v_max_f32 v40, v40, v23")
                a(f"v_mul_f32 v40, s{S_T7}, v40")
                a("v_add_f32 v34, v34, v35")
                a("v_add_f32 v36, v36, v37")
                a("v_add_f32 v48, v48, v49")
                a("v_add_f32 v50, v50, v51")
                a("v_add_f32 v34, v34, v36")
                a("v_add_f32 v48, v48, v50")
                a("v_add_f32 v34, v34, v48")
                a("v_log_f32 v35, v34")
                a("v_rcp_f32 v36, v34")
                a("v_add_f32 v35, v35, v40")
                for m2 in range(2):
                    for g in range(3): a(f"v_mov_b32 v{OUT+12*m2+4*g+3}, v5")
                    a(f"v_mov_b32 v{OUT+12*m2+10}, v35")
            for u in range(8):
                a(f"s_waitcnt lgkmcnt({2*(7-u)})")
                c = "0" if u == 0 else vr(OA + 16 * mi, 16)
                a(f"v_mfma_f32_32x32x16_bf16 {vr(OA+16*mi,16)}, {vr(AFR+32*mi+4*u,4)}, {vr(PF+4*u,4)}, {c}")
        for mi in range(2):
            for i in range(16): a(f"v_mul_f32 v{OA+16*mi+i}, v{OA+16*mi+i}, v36")
            self.pack_item(OUT + 12 * mi, OA + 16 * mi)
            for g, s in enumerate((S_T3, S_T4, S_T5)):
                a(f"buffer_store_dwordx4 {vr(OUT+12*mi+4*g,4)}, v33, {srd(SRD_WS)}, s{s} offen offset:{32*mi} sc1")
        self.stamp(5)
        if self.stop_after in ("A", "B", "C"):
            self.finish(); return
        a("s_barrier")
        a(f"s_and_b32 s{S_T0}, s{S_P0}, 15")
        a(f"s_cmp_ge_u32 s{S_T0}, 8")
        a("s_cbranch_scc1 L_T_notD")
        self.build_D()
        self.finish()
        a.label("L_T_notD")
        a(f"s_cmp_ge_u32 s{S_T0}, 15")
        a("s_cbranch_scc1 L_T_end")
        self.build_E()
        a.label("L_T_end")
        self.finish()

    def build_D(self):
        a = self.a
        S_KG, S_MS = S_P1, S_P2
        WR, WT, G, BF, ACC, R = 8, 40, 72, 104, 120, 128
        a(f"s_lshr_b32 s{S_T1}, s{S_P0}, 4")
        a(f"s_lshl_b32 s{S_T1}, s{S_T1}, 3")
        a(f"s_add_u32 s{S_T1}, s{S_T1}, s{S_T0}")
        a(f"s_lshr_b32 s{S_KG}, s{S_T1}, 4")
        a(f"s_and_b32 s{S_MS}, s{S_T1}, 15")
        self.mk_srd(SRD_A, S_WO, 4 << 20)
        a(f"s_lshl_b32 s{S_T2}, s{S_KG}, 3")
        a(f"s_add_u32 s{S_T2}, s{S_T2}, s{S_WAVE}")
        a(f"s_lshl_b32 s{S_T0}, s{S_T2}, 17")
        a(f"s_lshl_b32 s{S_T1}, s{S_MS}, 6")
        a(f"s_add_u32 s{S_T0}, s{S_T0}, s{S_T1}")
        self.gemv32_load(SRD_A, WR, 4, 1024, S_T0, 7)
        a("v_and_b32 v150, 3, v3")
        a("v_lshlrev_b32 v150, 9, v150")
        a("v_lshl_add_u32 v150, v2, 4, v150")
        a(f"s_lshl_b32 s{S_T2}, s{S_T2}, 11")
        a(f"s_add_u32 s{S_T2}, s{S_T2}, {hex(H4)}")
        a("v_bfe_u32 v151, v1, 2, 3")
        a("v_lshlrev_b32 v151, 10, v151")
        a("v_and_b32 v152, 3, v1")
        a("v_lshl_add_u32 v151, v152, 4, v151")
        a(f"s_lshl_b32 s{S_T3}, s{S_KG}, 13")
        a(f"s_add_u32 s{S_T3}, s{S_T3}, s{S_T1}")
        a(f"s_add_u32 s{S_T3}, s{S_T3}, {hex(H5)}")
        a("s_waitcnt vmcnt(0)")
        for ks in range(4): self.transpose_x1(WR + 8 * ks, WT + 8 * ks)
        self.stamp(6)
        loads = []
        for ks in range(4):
            for j in range(2): loads.append((G + 8 * ks + 4 * j, 150, f"s{S_T2}", 256 * j + 64 * ks))
        self.sweep(loads, "f24", 5, 153, 154, 155)
        self.stamp(7)
        for ks in range(4): self.frag_from_v(BF + 4 * ks, G + 8 * ks, G + 8 * ks + 4)
        for ks in range(4):
            for j in range(2):
                c = "0" if ks == 0 else vr(ACC + 4 * j, 4)
                a(f"v_mfma_f32_16x16x32_bf16 {vr(ACC+4*j,4)}, {vr(WT+8*ks+4*j,4)}, {vr(BF+4*ks,4)}, {c}")
        self.gemv32_partial_write(ACC, 7)
        a(f"s_cmp_lg_u32 s{S_WAVE}, 0")
        a("s_cbranch_scc1 L_D_done")
        self.gemv32_reduce(R, 7)
        self.cross32_sum([R, R + 1, R + 2, R + 3], R + 4)
        self.tag24(R + 8, R, 5)
        a("s_mov_b32 exec_hi, 0")
        a(f"buffer_store_dwordx4 {vr(R+8,4)}, v151, {srd(SRD_WS)}, s{S_T3} offen sc1")
        self.exec_all()
        self.stamp(8)
        a.label("L_D_done")

    def build_E(self):
        a = self.a
        S_FS = S_P1
        WR, WT, G, BF, ACC, R, XX, U = 8, 40, 72, 104, 120, 128, 144, 160
        HB = 8192
        a(f"s_lshr_b32 s{S_T1}, s{S_P0}, 4")
        a(f"s_mul_i32 s{S_T1}, s{S_T1}, 7")
        a(f"s_add_u32 s{S_T1}, s{S_T1}, s{S_T0}")
        a(f"s_sub_u32 s{S_FS}, s{S_T1}, 8")
        a(f"s_cmp_ge_u32 s{S_WAVE}, 4")
        a(f"s_cselect_b32 s{SRD_A}, s{S_WU}, s{S_WG}")
        a(f"s_cselect_b32 s{SRD_A+1}, s{S_WU+1}, s{S_WG+1}")
        a(f"s_and_b32 s{SRD_A+1}, s{SRD_A+1}, 0xffff")
        a(f"s_mov_b32 s{SRD_A+2}, {512*3584}")
        a(f"s_mov_b32 s{SRD_A+3}, 0x20000")
        a(f"s_and_b32 s{S_T2}, s{S_WAVE}, 3")
        a(f"s_mul_i32 s{S_T0}, s{S_T2}, {128*3584}")
        a(f"s_lshl_b32 s{S_T1}, s{S_FS}, 6")
        a(f"s_add_u32 s{S_T0}, s{S_T0}, s{S_T1}")
        self.gemv32_load(SRD_A, WR, 4, 3584, S_T0, 7)
        a("v_lshlrev_b32 v150, 4, v1")
        a(f"s_lshl_b32 s{S_T0}, s{S_T2}, 10")
        a(f"buffer_load_dwordx4 {vr(XX,4)}, v150, {srd(SRD_X)}, s{S_T0} offen")
        a(f"s_lshl_b32 s{S_T0}, s{S_T2}, 11")
        so = [S_T3, S_T4, S_T5, S_T6]
        for kg in range(4): a(f"s_add_u32 s{so[kg]}, s{S_T0}, {hex(H5 + kg*8192)}")
        a(f"s_lshl_b32 s{S_T0}, s{S_T2}, 10")
        a(f"s_add_u32 s{S_T0}, s{S_T0}, {HB}")
        a(f"v_add_u32 v151, s{S_T0}, v150")
        a("v_and_b32 v152, 3, v3")
        a("v_lshlrev_b32 v152, 10, v152")
        a("v_lshl_add_u32 v152, v2, 4, v152")
        a(f"s_lshl_b32 s{S_T0}, s{S_T2}, 8")
        a(f"s_add_u32 s{S_T0}, s{S_T0}, {HB}")
        a(f"v_add_u32 v152, s{S_T0}, v152")
        a("v_bfe_u32 v153, v1, 2, 3")
        a("v_mul_u32_u24 v153, 3584, v153")
        a("v_and_b32 v154, 3, v1")
        a("v_lshl_add_u32 v153, v154, 4, v153")
        a(f"s_add_u32 s{S_P3}, s{S_T1}, {hex(H6)}")
        a("s_waitcnt vmcnt(0)")
        for ks in range(4): self.transpose_x1(WR + 8 * ks, WT + 8 * ks)
        self.stamp(6)
        a(f"s_cmp_ge_u32 s{S_WAVE}, 4")
        a("s_cbranch_scc1 L_E_wait")
        loads = []
        for kg in range(4):
            for j in range(2): loads.append((G + 8 * kg + 4 * j, 150, f"s{so[kg]}", 1024 * j))
        self.sweep(loads, "f24", 5, 155, 156, 157)
        self.stamp(7)
        for st in (16, 8):
            for base in range(0, st, 2):
                a(f"v_pk_add_f32 {vr(G+base,2)}, {vr(G+base,2)}, {vr(G+st+base,2)}")
        for r in range(4): a(f"v_cvt_pk_bf16_f32 v{G+8+r}, v{G+r}, v{G+4+r}")
        for r in range(4):
            self.unpack(U + 2 * r, G + 8 + r)
            self.unpack(U + 8 + 2 * r, XX + r)
        for i in range(0, 8, 2): a(f"v_pk_add_f32 {vr(U+i,2)}, {vr(U+i,2)}, {vr(U+8+i,2)}")
        for r in range(4): a(f"v_cvt_pk_bf16_f32 v{G+8+r}, v{U+2*r}, v{U+2*r+1}")
        for r in range(4): self.unpack(U + 2 * r, G + 8 + r)
        a(f"v_add_f32 v155, v{U}, v{U+1}")
        for i in range(2, 8): a(f"v_add_f32 v155, v155, v{U+i}")
        self.wave_allreduce_sum(155, 156)
        a("v_mul_f32 v155, 0x3b000000, v155")
        for i in range(8): a(f"v_sub_f32 v{U+8+i}, v{U+i}, v155")
        a(f"v_mul_f32 v157, v{U+8}, v{U+8}")
        for i in range(1, 8): a(f"v_fmac_f32 v157, v{U+8+i}, v{U+8+i}")
        self.wave_allreduce_sum(157, 156)
        a("v_mul_f32 v157, 0x3b000000, v157")
        self.ln_finish(155, 157)
        self.ln_apply(U, G + 8, 155, 157)
        a(f"ds_write_b128 v151, {vr(G+8,4)}")
        a("s_waitcnt lgkmcnt(0)")
        a.label("L_E_wait")
        a("s_barrier")
        for ks in range(4): a(f"ds_read_b128 {vr(BF+4*ks,4)}, v152 offset:{64*ks}")
        a("s_waitcnt lgkmcnt(0)")
        for ks in range(4):
            for j in range(2):
                c = "0" if ks == 0 else vr(ACC + 4 * j, 4)
                a(f"v_mfma_f32_16x16x32_bf16 {vr(ACC+4*j,4)}, {vr(WT+8*ks+4*j,4)}, {vr(BF+4*ks,4)}, {c}")
        self.gemv32_partial_write(ACC, 7)
        a(f"s_cmp_lg_u32 s{S_WAVE}, 0")
        a("s_cbranch_scc1 L_E_done")
        self.gemv32_reduce(R, 7)
        for r in range(4): self.round_bf16(R + r)
        for r in range(4): a(f"v_mov_b32 v{R+4+r}, v{R+r}")
        for r in range(4): a(f"v_permlane32_swap_b32 v{R+r}, v{R+4+r}")
        for r in range(4): a(f"v_mul_f32 v{R+8+r}, 0xbfb8aa3b, v{R+r}")
        for r in range(4): a(f"v_exp_f32 v{R+8+r}, v{R+8+r}")
        for r in range(4): a(f"v_add_f32 v{R+8+r}, 1.0, v{R+8+r}")
        for r in range(4): a(f"v_rcp_f32 v{R+8+r}, v{R+8+r}")
        for r in range(4): a(f"v_mul_f32 v{R+8+r}, v{R+8+r}, v{R+r}")
        for r in range(4): self.round_bf16(R + 8 + r)
        for r in range(4): a(f"v_mul_f32 v{R+8+r}, v{R+8+r}, v{R+4+r}")
        self.tag24(R + 12, R + 8, 5)
        a("s_mov_b32 exec_hi, 0")
        a(f"buffer_store_dwordx4 {vr(R+12,4)}, v153, {srd(SRD_WS)}, s{S_P3} offen sc1")
        self.exec_all()
        self.stamp(8)
        a.label("L_E_done")

if __name__ == "__main__":
    import argparse
    ap = argparse.ArgumentParser()
    ap.add_argument("-o", default="sequential_preLN__compressed_kv_cla__swiglu_ffn__decode.s")
    ap.add_argument("--stamps", action="store_true")
    ap.add_argument("--stop", default=None)
    args = ap.parse_args()
    open(args.o, "w").write(Gen(stamps=args.stamps, stop_after=args.stop).build())
```

```python
import sys, os
sys.path.insert(0, os.path.dirname(os.path.abspath(__file__)))
from emit import Asm

KNAME = "sequential_preLN__compressed_kv_cla__swiglu_ffn__decode_kernel"
REF = "sequential_preLN__compressed_kv_cla__swiglu_ffn__decode.s.ref"

H1 = 0x1000
H2 = 0x50000
H4 = 0x80000
H5 = 0x90000
H6 = 0x98000
FL3 = 0xA0000
H3 = 0x100000
STAMP = 0x800000
WS_USED = 0x1000000
TAGK = 0x9E3779B1
MAXIT = 400000

S_X, S_CKV, S_WQ, S_WUK, S_WUV, S_WO, S_BX, S_WG, S_WU, S_WD, S_OUT, S_DBG, S_WS = [4 + 2 * i for i in range(13)]
S_CNT = 30
SRD_WS, SRD_A, SRD_B, SRD_X, SRD_OUT = 32, 36, 40, 44, 48
S_WAVE, S_P0, S_P1, S_P2, S_P3 = 53, 54, 55, 56, 57
S_T0, S_T1, S_T2, S_T3 = 58, 59, 60, 61
S_E0 = 62
S_SELLO, S_SELHI, S_CK0, S_CK1 = 64, 65, 66, 67
S_TS0 = 68
S_M16 = 72
S_T4, S_T5, S_T6, S_T7 = 73, 74, 75, 76
S_STAMP = 78
NSTAMP = 12

def srd(n): return f"s[{n}:{n+3}]"
def vr(a, n): return f"v[{a}:{a+n-1}]"

class Gen:
    def __init__(self, stamps=False, **kw):
        self.a = Asm()
        self.stamps = stamps
        self.t_first = kw.get("t_first", 0)
        self.t_sweep = kw.get("t_sweep", 8)

    def stamp(self, i):
        if not self.stamps: return
        self.a(f"s_memrealtime s[{S_STAMP+2*i}:{S_STAMP+2*i+1}]")
        self.a("s_waitcnt lgkmcnt(0)")

    def mk_srd(self, dst, ptr, size):
        a = self.a
        a(f"s_mov_b32 s{dst}, s{ptr}")
        a(f"s_and_b32 s{dst+1}, s{ptr+1}, 0xffff")
        a(f"s_mov_b32 s{dst+2}, {hex(size)}")
        a(f"s_mov_b32 s{dst+3}, 0x20000")

    def exec_mask(self, lo, hi=None):
        hi = lo if hi is None else hi
        self.a(f"s_mov_b32 exec_lo, {hex(lo)}\ns_mov_b32 exec_hi, {hex(hi)}")
    def exec_all(self):
        self.a("s_mov_b64 exec, -1")

    def transpose_x4(self, src, dst):
        for jj in range(8):
            t, e = jj >> 1, jj & 1
            for u in range(4):
                self.a(f"v_perm_b32 v{dst+4*jj+u}, v{src+4*(2*u+1)+t}, v{src+4*(2*u)+t}, s{S_SELHI if e else S_SELLO}")

    def tag24(self, dst, src):
        for r in range(4):
            self.a(f"v_perm_b32 v{dst+r}, v{src+r}, v5, s{S_TS0+r}")

    def sweep(self, loads, kind, vt0, vt1, vacc, mid=None, restore=True):
        a = self.a
        lp = a.newlabel("poll"); ld = a.newlabel("pdone"); lc = a.newlabel("pchk")
        a(f"s_mov_b32 s{S_CNT}, {MAXIT}")
        def issue():
            for (d, vo, so, imm) in loads:
                a(f"buffer_load_dwordx4 {vr(d,4)}, v{vo}, {srd(SRD_WS)}, {so} offen offset:{imm} sc1")
        if mid is not None:
            issue(); mid()
            a(f"s_branch {lc}")
        a.label(lp)
        issue()
        a.label(lc)
        n = len(loads)
        first = True
        for i, (d, vo, so, imm) in enumerate(loads):
            a(f"s_waitcnt vmcnt({n-1-i})")
            if kind == "t32":
                src = d + 3
            else:
                a(f"v_perm_b32 v{vt0}, v{d+1}, v{d}, s{S_CK0}")
                a(f"v_perm_b32 v{vt1}, v{d+3}, v{d+2}, s{S_CK1}")
                a(f"v_or_b32 v{vt0}, v{vt0}, v{vt1}")
                src = vt0
            if first:
                a(f"v_xor_b32 v{vacc}, v{src}, v5"); first = False
            else:
                a(f"v_bitop3_b32 v{vacc}, v{vacc}, v{src}, v5 bitop3:0xf6")
        a(f"v_cmp_ne_u32 vcc, 0, v{vacc}")
        a("s_and_b64 exec, exec, vcc")
        a(f"s_cbranch_scc0 {ld}")
        a(f"s_sub_u32 s{S_CNT}, s{S_CNT}, 1")
        a(f"s_cbranch_scc0 {lp}")
        a.label(ld)
        if restore: self.exec_all()

    def row_allreduce(self, op, v):
        for n in (8, 4, 2, 1):
            self.a(f"{op}_dpp v{v}, v{v}, v{v} row_ror:{n} row_mask:0xf bank_mask:0xf")

    def cross_sum(self, regs, tmp, which=32, op="v_add_f32"):
        a = self.a
        for i, r in enumerate(regs): a(f"v_mov_b32 v{tmp+i}, v{r}")
        for i, r in enumerate(regs): a(f"v_permlane{which}_swap_b32 v{r}, v{tmp+i}")
        for i, r in enumerate(regs): a(f"{op} v{r}, v{r}, v{tmp+i}")

    def unpack(self, dst, src):
        self.a(f"v_lshlrev_b32 v{dst}, 16, v{src}")
        self.a(f"v_and_b32 v{dst+1}, s{S_M16}, v{src}")

    def pk_tree(self, base, n, stop):
        st = n // 2
        while st >= stop:
            for i in range(0, st, 2):
                self.a(f"v_pk_add_f32 {vr(base+i,2)}, {vr(base+i,2)}, {vr(base+st+i,2)}")
            st //= 2

    def x_row_stats(self, XS, U, vm, vv, vaddr, want_var=True):
        a = self.a
        a(f"v_lshlrev_b32 v{vaddr}, 10, v2")
        a(f"v_lshl_add_u32 v{vaddr}, v3, 4, v{vaddr}")
        for i in range(4):
            a(f"buffer_load_dwordx4 {vr(XS+4*i,4)}, v{vaddr}, {srd(SRD_X)}, 0 offen offset:{256*i}")
    def x_row_stats2(self, XS, U, vm, vv, want_var=True):
        a = self.a
        for i in range(16): self.unpack(U + 2 * i, XS + i)
        for i in range(0, 16, 2): a(f"v_pk_add_f32 {vr(XS+i,2)}, {vr(U+i,2)}, {vr(U+16+i,2)}")
        self.pk_tree(XS, 16, 2)
        a(f"v_add_f32 v{vm}, v{XS}, v{XS+1}")
        self.row_allreduce("v_add_f32", vm)
        a(f"v_mul_f32 v{vm}, 0x3b000000, v{vm}")
        if want_var:
            a(f"v_mov_b32 v{vm+1}, v{vm}")
            assert vm % 2 == 0
            for i in range(0, 32, 2): a(f"v_pk_add_f32 {vr(U+i,2)}, {vr(U+i,2)}, {vr(vm,2)} neg_lo:[0,1] neg_hi:[0,1]")
            for i in range(0, 8, 2): a(f"v_pk_mul_f32 {vr(XS+i,2)}, {vr(U+i,2)}, {vr(U+i,2)}")
            for i in range(8, 32, 2): a(f"v_pk_fma_f32 {vr(XS+(i&7),2)}, {vr(U+i,2)}, {vr(U+i,2)}, {vr(XS+(i&7),2)}")
            self.pk_tree(XS, 8, 2)
            a(f"v_add_f32 v{vv}, v{XS}, v{XS+1}")
            self.row_allreduce("v_add_f32", vv)
            a(f"v_mul_f32 v{vv}, 0x3b000000, v{vv}")

    def finish(self):
        a = self.a
        if self.stamps:
            a("s_waitcnt vmcnt(0)")
            self.stamp(NSTAMP - 1)
            a("s_mov_b64 exec, 1")
            for i in range(NSTAMP): a(f"v_mov_b32 v{8+i}, s{S_STAMP+2*i}")
            a(f"s_lshl_b32 s{S_T0}, s2, 3")
            a(f"s_add_u32 s{S_T0}, s{S_T0}, s{S_WAVE}")
            a(f"s_lshl_b32 s{S_T0}, s{S_T0}, 6")
            a(f"s_add_u32 s{S_T0}, s{S_T0}, {hex(STAMP)}")
            for i in range(NSTAMP // 4):
                a(f"buffer_store_dwordx4 {vr(8+4*i,4)}, v6, {srd(SRD_WS)}, s{S_T0} offen offset:{16*i}")
        a("s_endpgm")

    def tag_ready(self):
        self.a(f"v_add_u32 v5, {hex(TAGK)}, v5")

    def build(self):
        a = self.a
        hdr = open(REF).read().split("; @launch")[0]
        a.raw(hdr.rstrip("\n"))
        a.raw("; @launch grid=(256,1,1) block=(512,1,1) lds=163840")
        a.raw('.amdgcn_target "amdgcn-amd-amdhsa--gfx950"')
        a.raw(".text")
        a.raw(f".globl {KNAME}")
        a.raw(".p2align 8")
        a.raw(f".type {KNAME},@function")
        a.raw(f"{KNAME}:")
        a("s_cmp_ge_u32 s2, 256")
        a("s_cbranch_scc1 L_exit")
        a("s_load_dwordx16 s[4:19], s[0:1], 0")
        a("s_load_dwordx8 s[20:27], s[0:1], 64")
        a("s_load_dwordx2 s[28:29], s[0:1], 96")
        if self.stamps:
            for i in range(NSTAMP): a(f"s_mov_b32 s{S_STAMP+2*i}, 0")
        a("v_lshrrev_b32 v4, 6, v0")
        a("v_and_b32 v1, 63, v0")
        a(f"v_readfirstlane_b32 s{S_WAVE}, v4")
        a("v_lshrrev_b32 v2, 4, v1")
        a("v_and_b32 v3, 15, v1")
        a(f"s_mov_b32 s{S_SELLO}, 0x05040100")
        a(f"s_mov_b32 s{S_SELHI}, 0x07060302")
        a(f"s_mov_b32 s{S_CK0}, 0x0c0c0400")
        a(f"s_mov_b32 s{S_CK1}, 0x04000c0c")
        for r in range(4): a(f"s_mov_b32 s{S_TS0+r}, {hex(0x07060500 + r)}")
        a(f"s_mov_b32 s{S_M16}, 0xffff0000")
        a("v_mov_b32 v6, 0")
        a(f"s_and_b32 s{S_T0}, s2, 7")
        a(f"s_lshr_b32 s{S_T1}, s2, 4")
        a(f"s_lshl_b32 s{S_T0}, s{S_T0}, 4")
        a(f"s_add_u32 s{S_P0}, s{S_T0}, s{S_T1}")
        a("s_waitcnt lgkmcnt(0)")
        self.stamp(0)
        self.mk_srd(SRD_WS, S_WS, WS_USED)
        self.mk_srd(SRD_X, S_X, 4096)
        a("s_bitcmp1_b32 s2, 3")
        a("s_cbranch_scc1 L_T")
        self.build_W()
        a.label("L_T")
        self.build_T()
        a.label("L_exit")
        a("s_endpgm")
        a.raw('.section .rodata,"a"')
        a.raw(".p2align 6")
        a.raw(f".amdhsa_kernel {KNAME}")
        a.raw("  .amdhsa_next_free_vgpr 256")
        a.raw("  .amdhsa_next_free_sgpr 102")
        a.raw("  .amdhsa_accum_offset 256")
        a.raw("  .amdhsa_group_segment_fixed_size 0")
        a.raw("  .amdhsa_kernarg_size 104")
        a.raw("  .amdhsa_user_sgpr_count 2")
        a.raw("  .amdhsa_user_sgpr_kernarg_segment_ptr 1")
        a.raw("  .amdhsa_system_sgpr_workgroup_id_x 1")
        a.raw(".end_amdhsa_kernel")
        return a.text()

    def load_epoch(self):
        self.a(f"buffer_load_dword v5, v6, {srd(SRD_WS)}, 0 offen sc1")

    def build_W(self):
        a = self.a
        S_H, S_J = S_P1, S_P2
        UKB = 32768
        a(f"s_lshr_b32 s{S_H}, s{S_P0}, 2")
        a(f"s_and_b32 s{S_J}, s{S_P0}, 3")
        a(f"s_cmp_ge_u32 s{S_WAVE}, 6")
        a("s_cbranch_scc1 L_W_red")
        a(f"s_cmp_ge_u32 s{S_WAVE}, 4")
        a("s_cbranch_scc1 L_W_qa")
        self.mk_srd(SRD_A, S_WQ, 4 << 20)
        XO, WR, WT, ACC = 24, 32, 64, 96
        a("v_lshlrev_b32 v29, 4, v3")
        a("v_lshl_add_u32 v29, v2, 16, v29")
        a(f"s_lshl_b32 s{S_T0}, s{S_J}, 2")
        a(f"s_add_u32 s{S_T0}, s{S_T0}, s{S_WAVE}")
        a(f"s_lshl_b32 s{S_T1}, s{S_T0}, 18")
        a(f"s_lshl_b32 s{S_T2}, s{S_H}, 8")
        a(f"s_add_u32 s{S_T1}, s{S_T1}, s{S_T2}")
        for i in range(8):
            a(f"buffer_load_dwordx4 {vr(WR+4*i,4)}, v29, {srd(SRD_A)}, s{S_T1} offen nt")
            if i < 7: a(f"s_add_u32 s{S_T1}, s{S_T1}, 8192")
        for i in range(4): a(f"v_mov_b32 v{XO+i}, 0x3f803f80")
        a("v_lshlrev_b32 v28, 10, v3")
        a("v_lshl_add_u32 v28, v2, 4, v28")
        a(f"s_lshl_b32 s{S_T1}, s{S_T0}, 6")
        self.exec_mask(0x000f000f)
        a(f"buffer_load_dwordx4 {vr(XO,4)}, v28, {srd(SRD_X)}, s{S_T1} offen")
        self.exec_all()
        self.load_epoch()
        a("v_lshlrev_b32 v29, 7, v2")
        a("v_lshl_add_u32 v29, v3, 4, v29")
        a(f"s_lshl_b32 s{S_T0}, s{S_WAVE}, 12")
        a(f"v_add_u32 v29, s{S_T0}, v29")
        a("s_waitcnt vmcnt(2)")
        self.stamp(1)
        self.transpose_x4(WR, WT)
        a("s_waitcnt vmcnt(1)")
        for jj in range(8):
            a(f"v_mfma_f32_16x16x32_bf16 {vr(ACC+4*jj,4)}, {vr(WT+4*jj,4)}, {vr(XO,4)}, 0")
        self.exec_mask(0x001f001f)
        for jj in range(8):
            a(f"ds_write_b128 v29, {vr(ACC+4*jj,4)} offset:{512*jj}")
        self.exec_all()
        a("s_waitcnt lgkmcnt(0)")
        a("s_barrier")
        self.stamp(2)
        a("s_waitcnt vmcnt(0)")
        self.tag_ready()
        a("s_branch L_W_join")
        a.label("L_W_red")
        XS, U = 40, 56
        self.x_row_stats(XS, U, 30, 32, 7)
        self.load_epoch()
        a(f"s_sub_u32 s{S_T0}, s{S_WAVE}, 6")
        a(f"s_lshl_b32 s{S_T2}, s{S_T0}, 11")
        a("v_lshrrev_b32 v33, 2, v1")
        a("v_lshlrev_b32 v33, 7, v33")
        a(f"v_add_u32 v33, s{S_T2}, v33")
        a("v_and_b32 v34, 3, v1")
        a("v_lshl_add_u32 v35, v34, 4, v33")
        a("v_lshlrev_b32 v34, 6, v34")
        a(f"s_lshl_b32 s{S_T0}, s{S_T0}, 10")
        a("v_lshlrev_b32 v7, 4, v1")
        a(f"s_lshl_b32 s{S_T1}, s{S_P0}, 11")
        a(f"s_add_u32 s{S_T1}, s{S_T1}, s{S_T0}")
        a(f"s_add_u32 s{S_T1}, s{S_T1}, {hex(H1)}")
        a("s_waitcnt vmcnt(1)")
        self.x_row_stats2(XS, U, 30, 32)
        a("v_add_f32 v32, 0x3727c5ac, v32")
        a("v_rsq_f32 v32, v32")
        a("ds_bpermute_b32 v30, v34, v30")
        a("ds_bpermute_b32 v32, v34, v32")
        a("s_waitcnt vmcnt(0) lgkmcnt(0)")
        self.tag_ready()
        a("v_mov_b32 v31, v30")
        a("v_mov_b32 v36, v32\nv_mov_b32 v37, v32")
        self.stamp(1)
        a("s_barrier")
        for p in range(4):
            a(f"ds_read_b128 {vr(40+4*p,4)}, v35 offset:{4096*p}")
            a(f"ds_read_b128 {vr(56+4*p,4)}, v33 offset:{4096*p+64}")
        a("s_waitcnt lgkmcnt(0)")
        self.pk_tree(40, 16, 4)
        self.pk_tree(56, 16, 4)
        for i in (0, 2):
            a(f"v_pk_fma_f32 {vr(40+i,2)}, {vr(56+i,2)}, v[30:31], {vr(40+i,2)} neg_lo:[1,0,0] neg_hi:[1,0,0]")
        for i in (0, 2):
            a(f"v_pk_mul_f32 {vr(40+i,2)}, {vr(40+i,2)}, v[36:37]")
        self.tag24(44, 40)
        a(f"buffer_store_dwordx4 v[44:47], v7, {srd(SRD_WS)}, s{S_T1} offen sc1")
        self.stamp(3)
        a("s_branch L_W_join")
        a.label("L_W_qa")
        self.mk_srd(SRD_A, S_WUK, 4 << 20)
        WK, G, BF, ACC, OUT = 8, 72, 104, 120, 136
        self.load_epoch()
        a("v_lshlrev_b32 v7, 2, v2")
        a("v_xor_b32 v7, v7, v3")
        a("v_lshlrev_b32 v7, 4, v7")
        a("v_lshl_add_u32 v152, v2, 13, v7")
        for e in range(1, 4): a(f"v_xor_b32 v{152+e}, {16*e}, v152")
        a(f"s_lshl_b32 s{S_T0}, s{S_J}, 1")
        a(f"s_add_u32 s{S_T0}, s{S_T0}, s{S_WAVE}")
        a(f"s_sub_u32 s{S_T0}, s{S_T0}, 4")
        a(f"s_lshl_b32 s{S_T1}, s{S_T0}, 19")
        a(f"s_lshl_b32 s{S_T2}, s{S_H}, 8")
        a(f"s_add_u32 s{S_T1}, s{S_T1}, s{S_T2}")
        a(f"s_and_b32 s{S_T4}, s{S_WAVE}, 1")
        a(f"s_lshl_b32 s{S_T4}, s{S_T4}, 14")
        a(f"s_add_u32 s{S_T4}, s{S_T4}, {UKB}")
        for rg in range(16):
            a(f"s_add_u32 m0, s{S_T4}, {rg*1024}")
            a(f"s_add_u32 s{S_T2}, s{S_T1}, {rg*4*8192}")
            a(f"buffer_load_dwordx4 v{152+((rg>>2)&3)}, {srd(SRD_A)}, s{S_T2} offen nt lds")
        a("v_and_b32 v148, 3, v3")
        a("v_lshrrev_b32 v151, 2, v3")
        a("v_xor_b32 v7, v2, v148")
        a("v_lshl_add_u32 v7, v7, 2, v151")
        a("v_lshlrev_b32 v7, 4, v7")
        a("v_lshl_add_u32 v7, v148, 8, v7")
        a("v_lshl_add_u32 v7, v151, 12, v7")
        a(f"v_add_u32 v156, s{S_T4}, v7")
        for r in range(1, 4): a(f"v_xor_b32 v{156+r}, {16*r}, v156")
        a("v_lshlrev_b32 v149, 11, v151")
        a("v_lshl_add_u32 v149, v2, 6, v149")
        a("v_lshl_add_u32 v149, v148, 4, v149")
        a(f"s_lshl_b32 s{S_T2}, s{S_H}, 13")
        a(f"s_add_u32 s{S_T2}, s{S_T2}, {hex(H1)}")
        a("v_mul_u32_u24 v150, 0xc000, v148")
        a("v_lshl_add_u32 v150, v2, 4, v150")
        a("v_lshl_add_u32 v150, v151, 6, v150")
        a(f"s_lshl_b32 s{S_T3}, s{S_H}, 3")
        a(f"s_add_u32 s{S_T3}, s{S_T3}, s{S_T0}")
        a(f"s_mul_i32 s{S_T3}, s{S_T3}, 192")
        a(f"s_add_u32 s{S_T3}, s{S_T3}, {hex(H2)}")
        a("s_barrier")
        a("s_waitcnt vmcnt(0)")
        self.stamp(1)
        self.tag_ready()
        for t in range(4):
            for r in range(4):
                a(f"ds_read_b128 {vr(WK+16*t+4*r,4)}, v{156+r} offset:{1024*t}")
        a(f"v_mov_b32 v{OUT+3}, v5")
        a(f"v_mov_b32 v{OUT+10}, 0")
        self.sweep([(G + 4 * jj, 149, f"s{S_T2}", 256 * jj) for jj in range(8)], "f24", 152, 153, 154)
        self.stamp(2)
        for r in range(4):
            for u in range(4):
                a(f"v_cvt_pk_bf16_f32 v{BF+4*r+u}, v{G+4*(2*u)+r}, v{G+4*(2*u+1)+r}")
        a("s_waitcnt lgkmcnt(0)")
        for r in range(4):
            for t in range(4):
                c = "0" if r == 0 else vr(ACC + 4 * t, 4)
                a(f"v_mfma_f32_16x16x32_bf16 {vr(ACC+4*t,4)}, {vr(WK+16*t+4*r,4)}, {vr(BF+4*r,4)}, {c}")
        for n in (4, 8):
            for i in range(16):
                a(f"v_add_f32_dpp v{ACC+i}, v{ACC+i}, v{ACC+i} row_ror:{n} row_mask:0xf bank_mask:0xf")
        pos = {0: 0, 1: 1, 2: 2, 3: 8, 4: 4, 5: 5, 6: 6, 7: 9}
        for d in range(8): a(f"v_cvt_pk_bf16_f32 v{OUT+pos[d]}, v{ACC+2*d}, v{ACC+2*d+1}")
        self.exec_mask(0x00f000f0)
        for r in range(3): a(f"v_mov_b32 v{OUT+r}, v{OUT+4+r}")
        self.exec_mask(0x0f000f00)
        for r in range(3): a(f"v_mov_b32 v{OUT+r}, v{OUT+8+r}")
        self.exec_mask(0x0fff0fff)
        a(f"buffer_store_dwordx4 {vr(OUT,4)}, v150, {srd(SRD_WS)}, s{S_T3} offen sc1")
        self.exec_all()
        self.stamp(3)
        a.label("L_W_join")
        a("s_barrier")
        self.build_C()

    def build_C(self):
        a = self.a
        S_H, S_J = S_P1, S_P2
        WR, WT, G, FG, ACC, U, AF = 8, 72, 136, 152, 160, 192, 200
        PS = 1088
        RB = 16384
        self.mk_srd(SRD_A, S_WUV, 4 << 20)
        a("v_lshlrev_b32 v7, 13, v2")
        a("v_lshl_add_u32 v7, v3, 4, v7")
        a(f"s_lshr_b32 s{S_T0}, s{S_WAVE}, 1")
        a(f"s_lshl_b32 s{S_T0}, s{S_T0}, 18")
        a(f"s_and_b32 s{S_T1}, s{S_WAVE}, 1")
        a(f"s_lshl_b32 s{S_T1}, s{S_T1}, 16")
        a(f"s_add_u32 s{S_T0}, s{S_T0}, s{S_T1}")
        a(f"s_lshl_b32 s{S_T1}, s{S_H}, 8")
        a(f"s_add_u32 s{S_T0}, s{S_T0}, s{S_T1}")
        for e in range(2):
            for i in range(8):
                row = 4 * e + 128 * (i >> 1) + 16 * (i & 1)
                a(f"s_add_u32 s{S_T1}, s{S_T0}, {row*8192}")
                a(f"buffer_load_dwordx4 {vr(WR+32*e+4*i,4)}, v7, {srd(SRD_A)}, s{S_T1} offen nt")
        a("v_lshlrev_b32 v209, 4, v1")
        a(f"s_lshl_b32 s{S_T0}, s{S_J}, 5")
        a(f"s_add_u32 s{S_T0}, s{S_T0}, s{S_H}")
        a(f"s_lshl_b32 s{S_T0}, s{S_T0}, 15")
        a(f"s_lshl_b32 s{S_T1}, s{S_WAVE}, 12")
        a(f"s_add_u32 s{S_T0}, s{S_T0}, s{S_T1}")
        a(f"s_add_u32 s{S_T3}, s{S_T0}, {hex(H3)}")
        a("v_lshlrev_b32 v211, 9, v1")
        a(f"s_lshl_b32 s{S_T0}, s{S_J}, 14")
        a(f"s_lshl_b32 s{S_T1}, s{S_H}, 4")
        a(f"s_add_u32 s{S_T0}, s{S_T0}, s{S_T1}")
        a(f"s_add_u32 s{S_T5}, s{S_T0}, {hex(FL3)}")
        a(f"s_mul_i32 s{S_T0}, s{S_WAVE}, {PS}")
        a(f"v_add_u32 v224, s{S_T0}, v209")
        a("v_and_b32 v225, 7, v3")
        a(f"v_mul_u32_u24 v225, {PS}, v225")
        a("v_lshl_add_u32 v225, v2, 4, v225")
        a(f"s_lshl_b32 s{S_T0}, s{S_WAVE}, 7")
        a(f"v_add_u32 v225, s{S_T0}, v225")
        a("v_lshlrev_b32 v226, 9, v2")
        a("v_lshl_add_u32 v226, v3, 4, v226")
        a(f"s_lshl_b32 s{S_T0}, s{S_WAVE}, 10")
        a(f"s_add_u32 s{S_T0}, s{S_T0}, {RB}")
        a(f"v_add_u32 v226, s{S_T0}, v226")
        a("v_and_b32 v228, 31, v1")
        a("v_lshlrev_b32 v228, 4, v228")
        a("v_lshrrev_b32 v227, 5, v1")
        a("v_lshl_add_u32 v227, v227, 12, v228")
        a(f"v_add_u32 v227, {RB}, v227")
        a(f"s_lshl_b32 s{S_T6}, s{S_P0}, 9")
        a(f"s_add_u32 s{S_T6}, s{S_T6}, {hex(H4)}")
        a(f"s_lshl_b32 s{S_T4}, s{S_WAVE}, 2")
        a("s_waitcnt vmcnt(8)")
        self.transpose_x4(WR, WT)
        a("s_waitcnt vmcnt(0)")
        self.transpose_x4(WR + 32, WT + 32)
        a("s_barrier")
        self.stamp(4)
        a("s_mov_b32 exec_hi, 0")
        self.sweep([(FG, 211, f"s{S_T5}", 0)], "t32", 210, 213, 212)
        for z in range(4):
            a(f"buffer_load_dwordx4 {vr(G+4*z,4)}, v209, {srd(SRD_WS)}, s{S_T3} offen offset:{1024*z} sc1")
        self.stamp(5)
        a(f"v_mov_b32 v210, v{FG}")
        self.row_allreduce("v_max_f32", 210)
        self.cross_sum([210], 213, 16, "v_max_f32")
        a(f"v_sub_f32 v212, v{FG}, v210")
        a("v_exp_f32 v212, v212")
        a(f"v_mul_f32 v210, v212, v{FG+1}")
        self.row_allreduce("v_add_f32", 210)
        self.cross_sum([210], 213, 16)
        a("v_rcp_f32 v210, v210")
        a("v_mul_f32 v212, v212, v210")
        es = [S_T0, S_T2, S_E0, S_T5]
        es = [58, 60, 62, 74]
        for z in range(4):
            a(f"v_readlane_b32 s{es[z]}, v212, s{S_T4}")
            if z < 3: a(f"s_add_u32 s{S_T4}, s{S_T4}, 1")
        for z in range(4):
            a(f"s_waitcnt vmcnt({3-z})")
            for d in range(4):
                t = U + 2 * (d & 1) if z else ACC + 2 * d
                self.unpack(t, G + 4 * z + d)
                if z == 0:
                    a(f"v_pk_mul_f32 {vr(ACC+2*d,2)}, {vr(t,2)}, s[{es[z]}:{es[z]+1}] op_sel_hi:[1,0]")
                else:
                    a(f"v_pk_fma_f32 {vr(ACC+2*d,2)}, {vr(t,2)}, s[{es[z]}:{es[z]+1}], {vr(ACC+2*d,2)} op_sel_hi:[1,0,1]")
        self.stamp(10)
        for d in range(4): a(f"v_cvt_pk_bf16_f32 v{AF+d}, v{ACC+2*d}, v{ACC+2*d+1}")
        a(f"ds_write_b128 v224, {vr(AF,4)}")
        a("s_waitcnt lgkmcnt(0)")
        a("s_barrier")
        a(f"ds_read_b128 {vr(AF,4)}, v225")
        a(f"ds_read_b128 {vr(AF+4,4)}, v225 offset:64")
        for e in range(2):
            a(f"s_waitcnt lgkmcnt({1-e})")
            for jj in range(8):
                c = "0" if e == 0 else vr(ACC + 4 * jj, 4)
                a(f"v_mfma_f32_16x16x32_bf16 {vr(ACC+4*jj,4)}, {vr(AF+4*e,4)}, {vr(WT+32*e+4*jj,4)}, {c}")
        for jj in range(8): a(f"v_pk_add_f32 {vr(ACC+4*jj,2)}, {vr(ACC+4*jj,2)}, {vr(ACC+4*jj+2,2)}")
        for jj in range(8): a(f"v_add_f32 v{216+jj}, v{ACC+4*jj}, v{ACC+4*jj+1}")
        a("s_mov_b32 exec_hi, 0")
        a("ds_write_b128 v226, v[216:219]")
        a("ds_write_b128 v226, v[220:223] offset:256")
        self.exec_all()
        a("s_waitcnt lgkmcnt(0)")
        a("s_barrier")
        a(f"s_cmp_lg_u32 s{S_WAVE}, 0")
        a("s_cbranch_scc1 L_C_done")
        for aa in range(4):
            for hp in range(2):
                a(f"ds_read_b128 {vr(8+8*aa+4*hp,4)}, v227 offset:{1024*aa+512*hp}")
        a("s_waitcnt lgkmcnt(0)")
        self.pk_tree(8, 32, 4)
        self.cross_sum([8, 9, 10, 11], 12)
        self.tag24(16, 8)
        a("s_mov_b32 exec_hi, 0")
        a(f"buffer_store_dwordx4 v[16:19], v228, {srd(SRD_WS)}, s{S_T6} offen sc1")
        self.exec_all()
        self.stamp(6)
        a.label("L_C_done")
        a(f"s_and_b32 s{S_T0}, s{S_P0}, 7")
        a(f"s_cmp_lg_u32 s{S_T0}, 0")
        a("s_cbranch_scc1 L_W_end")
        a("s_barrier")
        self.build_F()
        a.label("L_W_end")
        self.finish()

    def w32_setup(self, rowbytes, v0, v1, vt0, vt1):
        a = self.a
        a(f"v_lshrrev_b32 v{v0}, 2, v1")
        a(f"v_mul_u32_u24 v{v0}, {rowbytes}, v{v0}")
        a(f"v_and_b32 v{v1}, 3, v1")
        a(f"v_lshl_add_u32 v{v0}, v{v1}, 4, v{v0}")
        a(f"v_xor_b32 v{v1}, 32, v{v0}")
        assert rowbytes % 64 == 0
        a(f"v_bfe_u32 v{vt0}, v1, 2, 2")
        a(f"v_lshl_add_u32 v{vt0}, v2, 5, v{vt0}")
        a(f"v_lshlrev_b32 v{vt0}, 6, v{vt0}")
        a(f"v_and_b32 v{vt1}, 3, v1")
        a(f"v_lshl_add_u32 v{vt0}, v{vt1}, 3, v{vt0}")
        a(f"v_and_b32 v{vt1}, 1, v2")
        a(f"v_lshl_add_u32 v{vt0}, v{vt1}, 5, v{vt0}")
        a(f"v_xor_b32 v{vt1}, 32, v{vt0}")
    def w32_dma(self, srdn, s_src, s_lds, rowbytes, v0, v1, nrows=128):
        a = self.a
        for n in range(nrows // 16):
            a(f"s_add_u32 m0, s{s_lds}, {n*1024}")
            a(f"s_add_u32 s{S_T7}, s{s_src}, {n*16*rowbytes}")
            a(f"buffer_load_dwordx4 v{v1 if (n>>1)&1 else v0}, {srd(srdn)}, s{S_T7} offen nt lds")
    def w32_read(self, WT, vt0, vt1, fmt, ldsoff=0):
        for ks in range(4):
            for t in range(2):
                for aa in range(2):
                    A = (16 * aa + 4 * ks) if fmt == "Q" else (8 * ks + 4 * aa)
                    self.a(f"ds_read_b64_tr_b16 {vr(WT+8*ks+4*t+2*aa,2)}, v{vt1 if t else vt0} offset:{ldsoff + A*64}")
    def bcast_frags(self, BF, F):
        for ks in range(4):
            for r in range(4):
                self.a(f"v_mov_b32_dpp v{BF+4*ks+r}, v{F+r} quad_perm:[{ks},{ks},{ks},{ks}] row_mask:0xf bank_mask:0xf")
    def frag_cvt(self, F, g0, g1):
        a = self.a
        a(f"v_cvt_pk_bf16_f32 v{F}, v{g0}, v{g0+1}")
        a(f"v_cvt_pk_bf16_f32 v{F+1}, v{g0+2}, v{g0+3}")
        a(f"v_cvt_pk_bf16_f32 v{F+2}, v{g1}, v{g1+1}")
        a(f"v_cvt_pk_bf16_f32 v{F+3}, v{g1+2}, v{g1+3}")
    def part_addr(self, vw, vrd, base):
        a = self.a
        a(f"v_lshrrev_b32 v{vw}, 2, v3")
        a(f"v_lshlrev_b32 v{vw}, 7, v{vw}")
        a(f"v_lshl_add_u32 v{vw}, v2, 4, v{vw}")
        a(f"s_lshl_b32 s{S_T7}, s{S_WAVE}, 9")
        a(f"s_add_u32 s{S_T7}, s{S_T7}, {base}")
        a(f"v_add_u32 v{vw}, s{S_T7}, v{vw}")
        a(f"v_lshrrev_b32 v{vrd}, 5, v1")
        a(f"v_lshlrev_b32 v{vrd}, 7, v{vrd}")
        a(f"v_and_b32 v4, 31, v1")
        a(f"v_add_u32 v{vrd}, v{vrd}, v4")
        a(f"v_lshlrev_b32 v{vrd}, 4, v{vrd}")
        a(f"v_add_u32 v{vrd}, {base}, v{vrd}")
    def reduce4(self, R, vrd):
        a = self.a
        for aa in range(4): a(f"ds_read_b128 {vr(R+4*aa,4)}, v{vrd} offset:{512*aa}")
        a("s_waitcnt lgkmcnt(0)")
        self.pk_tree(R, 16, 4)

    def build_F(self):
        a = self.a
        S_MS = S_P3
        WT, G, F, BF, ACC, R, HH = 8, 72, 88, 96, 128, 136, 152
        PBASE = 131072
        a(f"s_lshr_b32 s{S_MS}, s{S_P0}, 3")
        self.part_addr(160, 161, PBASE)
        a(f"s_lshl_b32 s{S_T1}, s{S_MS}, 6")
        a(f"s_cmp_eq_u32 s{S_WAVE}, 7")
        a("s_cbranch_scc1 L_F_res")
        self.mk_srd(SRD_A, S_WD, 1792 * 1024)
        self.w32_setup(1024, 162, 163, 164, 165)
        a(f"s_lshl_b32 s{S_T0}, s{S_WAVE}, 18")
        a(f"s_add_u32 s{S_T0}, s{S_T0}, s{S_T1}")
        a(f"s_lshl_b32 s{S_T2}, s{S_WAVE}, 14")
        self.w32_dma(SRD_A, S_T0, S_T2, 1024, 162, 163, nrows=256)
        a(f"v_add_u32 v164, s{S_T2}, v164")
        a(f"v_add_u32 v165, s{S_T2}, v165")
        a("v_lshrrev_b32 v166, 2, v3")
        a("v_lshlrev_b32 v166, 7, v166")
        a("v_and_b32 v167, 3, v3")
        a("v_lshl_add_u32 v166, v167, 4, v166")
        a("v_lshl_add_u32 v166, v2, 9, v166")
        a(f"s_lshl_b32 s{S_T6}, s{S_WAVE}, 12")
        a(f"s_add_u32 s{S_T6}, s{S_T6}, {hex(H6)}")
        a("s_waitcnt vmcnt(0)")
        for S in range(2): self.w32_read(WT + 32 * S, 164, 165, "Q", 8192 * S)
        a("s_waitcnt lgkmcnt(0)")
        a("s_barrier")
        self.stamp(7)
        self.sweep([(G + 8 * S + 4 * t, 166, f"s{S_T6}", 2048 * S + 64 * t) for S in range(2) for t in range(2)], "f24", 168, 169, 170)
        self.stamp(9)
        for S in range(2):
            self.frag_cvt(F + 4 * S, G + 8 * S, G + 8 * S + 4)
        for S in range(2):
            self.bcast_frags(BF + 16 * S, F + 4 * S)
        for S in range(2):
            for ks in range(4):
                for t in range(2):
                    c = "0" if (S == 0 and ks == 0) else vr(ACC + 4 * t, 4)
                    a(f"v_mfma_f32_16x16x32_bf16 {vr(ACC+4*t,4)}, {vr(WT+32*S+8*ks+4*t,4)}, {vr(BF+16*S+4*ks,4)}, {c}")
        self.exec_mask(0x11111111)
        for t in range(2): a(f"ds_write_b128 v160, {vr(ACC+4*t,4)} offset:{64*t}")
        self.exec_all()
        a("s_waitcnt lgkmcnt(0)")
        a("s_barrier")
        a("s_branch L_F_done")
        a.label("L_F_res")
        self.mk_srd(SRD_OUT, S_OUT, 4096)
        a("v_bfe_u32 v162, v1, 3, 2")
        a("v_lshlrev_b32 v162, 10, v162")
        a("v_and_b32 v163, 7, v1")
        a("v_lshl_add_u32 v162, v163, 3, v162")
        a(f"buffer_load_dwordx2 v[164:165], v162, {srd(SRD_X)}, s{S_T1} offen")
        a("v_and_b32 v166, 31, v1")
        a("v_lshlrev_b32 v166, 4, v166")
        a("v_lshrrev_b32 v167, 5, v1")
        a("v_lshl_add_u32 v166, v167, 14, v166")
        a(f"s_lshl_b32 s{S_T6}, s{S_MS}, 9")
        a(f"s_add_u32 s{S_T2}, s{S_T6}, {hex(H5)}")
        a(f"s_add_u32 s{S_T3}, s{S_T6}, {hex(H5+8192)}")
        a("s_waitcnt vmcnt(0)")
        self.unpack(HH, 164); self.unpack(HH + 2, 165)
        a("s_mov_b32 exec_lo, 0")
        for r in range(4): a(f"v_mov_b32 v{HH+r}, 0")
        self.exec_all()
        a("s_barrier")
        self.stamp(7)
        self.sweep([(G, 166, f"s{S_T2}", 0), (G + 4, 166, f"s{S_T3}", 0)], "f24", 168, 169, 170)
        self.stamp(8)
        for i in (0, 2):
            a(f"v_pk_add_f32 {vr(HH+i,2)}, {vr(HH+i,2)}, {vr(G+i,2)}")
            a(f"v_pk_add_f32 {vr(HH+i,2)}, {vr(HH+i,2)}, {vr(G+4+i,2)}")
        a("s_barrier")
        for aa in range(3): a(f"ds_read_b128 {vr(R+4*aa,4)}, v161 offset:{512*aa}")
        a("s_mov_b32 exec_hi, 0")
        a(f"ds_read_b128 {vr(R+12,4)}, v161 offset:1536")
        self.exec_mask(0, 0xffffffff)
        for r in range(4): a(f"v_mov_b32 v{R+12+r}, 0")
        self.exec_all()
        a("s_waitcnt lgkmcnt(0)")
        self.pk_tree(R, 16, 4)
        for i in (0, 2): a(f"v_pk_add_f32 {vr(R+i,2)}, {vr(R+i,2)}, {vr(HH+i,2)}")
        self.cross_sum([R, R + 1, R + 2, R + 3], R + 4)
        a(f"v_cvt_pk_bf16_f32 v{R+8}, v{R}, v{R+1}")
        a(f"v_cvt_pk_bf16_f32 v{R+9}, v{R+2}, v{R+3}")
        a("s_mov_b32 exec_hi, 0")
        a(f"buffer_store_dwordx2 {vr(R+8,2)}, v162, {srd(SRD_OUT)}, s{S_T1} offen")
        a(f"s_cmp_lg_u32 s{S_MS}, 0")
        a("s_cbranch_scc1 L_F_done")
        a("s_mov_b64 exec, 1")
        a(f"buffer_store_dword v5, v6, {srd(SRD_WS)}, 0 offen sc1")
        a.label("L_F_done")
        self.exec_all()

    def build_T(self):
        a = self.a
        S_B, S_S = S_P1, S_P2
        QB = 131072
        MX, LB, PB = QB, QB + 1024, QB + 2048
        a(f"s_lshr_b32 s{S_B}, s{S_P0}, 5")
        a(f"s_and_b32 s{S_S}, s{S_P0}, 31")
        a("v_and_b32 v44, 31, v1")
        a("v_lshrrev_b32 v45, 5, v1")
        a(f"s_cmp_ge_u32 s{S_WAVE}, 4")
        a("s_cbranch_scc1 L_T_pvw")
        self.mk_srd(SRD_A, S_CKV, 16 << 20)
        a("v_lshlrev_b32 v7, 2, v2")
        a("v_xor_b32 v7, v7, v3")
        a("v_lshlrev_b32 v7, 4, v7")
        a("v_lshl_add_u32 v8, v2, 10, v7")
        br = [0, 2, 1, 3]
        for e in range(1, 4): a(f"v_xor_b32 v{8+e}, {16*br[e]}, v8")
        a(f"s_lshl_b32 s{S_T0}, s{S_P0}, 17")
        a(f"s_lshl_b32 s{S_T1}, s{S_WAVE}, 15")
        a(f"s_add_u32 s{S_T0}, s{S_T0}, s{S_T1}")
        a(f"s_lshl_b32 s{S_T1}, s{S_WAVE}, 13")
        def dma(q):
            for e in range(8):
                a(f"s_add_u32 m0, s{S_T1}, {q*32768 + e*1024}")
                a(f"s_add_u32 s{S_T2}, s{S_T0}, {e*4096 + q*256}")
                a(f"buffer_load_dwordx4 v{8+(e&3)}, {srd(SRD_A)}, s{S_T2} offen nt lds")
        self.load_epoch()
        dma(0)
        a(f"s_mov_b32 s{S_T7}, 0x3e0293ee")
        a("v_lshlrev_b32 v41, 5, v44")
        a(f"v_add_u32 v41, {MX}, v41")
        a("v_and_b32 v46, 3, v1")
        a("v_lshlrev_b32 v46, 2, v46")
        a("v_bfe_u32 v47, v1, 2, 1")
        a("v_lshl_add_u32 v46, v47, 1, v46")
        a("v_bfe_u32 v47, v1, 3, 1")
        a("v_add_u32 v46, v46, v47")
        a("v_xor_b32 v46, v46, v45")
        a("v_lshlrev_b32 v46, 4, v46")
        a("v_lshl_add_u32 v46, v44, 8, v46")
        RC, RQ, RC2 = 48, 56, 208
        for t in range(8): a(f"v_xor_b32 v{RQ+t}, {32*t}, v46")
        for t in range(8):
            a(f"v_add_u32 v{RC+t}, s{S_T1}, v{RQ+t}")
            a(f"v_add_u32 v{RQ+t}, {QB}, v{RQ+t}")
            a(f"v_add_u32 v{RC2+t}, 0x10000, v{RC+t}")
        a("v_lshl_add_u32 v42, v45, 2, v41")
        a(f"s_lshl_b32 s{S_T6}, s{S_WAVE}, 3")
        a(f"v_add_u32 v42, s{S_T6}, v42")
        a("v_lshlrev_b32 v24, 4, v1")
        a(f"s_lshl_b32 s{S_T6}, s{S_WAVE}, 11")
        a(f"s_add_u32 s{S_T6}, s{S_T6}, {PB}")
        a(f"v_add_u32 v24, s{S_T6}, v24")
        a("v_lshlrev_b32 v34, 4, v44")
        a(f"s_lshl_b32 s{S_T5}, s{S_P0}, 9")
        a(f"s_add_u32 s{S_T5}, s{S_T5}, {hex(FL3)}")
        a(f"s_waitcnt vmcnt({self.t_first})")
        self.stamp(1)
        dma(1); dma(2)
        a(f"s_waitcnt vmcnt({min(self.t_sweep, 8)})")
        self.tag_ready()
        a("s_barrier")
        a("s_barrier")
        dma(3)
        self.stamp(2)
        a("s_barrier")
        self.stamp(3)
        SC = 64
        FA, FB, FQ3 = 80, 112, 144
        D = 6
        def rd(n):
            q, t = n >> 3, n & 7
            if n == 16: a("s_waitcnt vmcnt(8)")
            rc = RC if q < 2 else RC2
            a(f"ds_read_b128 {vr(FA+4*t,4)}, v{rc+t} offset:{32768*(q&1)}")
            a(f"ds_read_b128 {vr(FB+4*t,4)}, v{RQ+t} offset:{8192*q}")
        for n in range(D): rd(n)
        for n in range(24):
            if n + D < 24:
                rd(n + D); pend = 2 * D
            else:
                k = n + D - 24
                for t in ((k,) if k < 4 else (2 * k - 4, 2 * k - 3)):
                    a(f"ds_read_b128 {vr(FQ3+4*t,4)}, v{RQ+t} offset:{8192*3}")
                nq = (k + 1) if k < 4 else (2 * k - 2)
                pend = 2 * (23 - n) + nq
            a(f"s_waitcnt lgkmcnt({min(pend,15)})")
            if n == 16: a("s_barrier")
            c = "0" if n == 0 else vr(SC, 16)
            a(f"v_mfma_f32_32x32x16_bf16 {vr(SC,16)}, {vr(FA+4*(n&7),4)}, {vr(FB+4*(n&7),4)}, {c}")
        a("s_waitcnt vmcnt(0)")
        self.stamp(8)
        for t in range(8): a(f"ds_read_b128 {vr(FB+4*t,4)}, v{RC2+t} offset:32768")
        a("s_barrier")
        for t in range(8):
            a(f"s_waitcnt lgkmcnt({7-t})")
            a(f"v_mfma_f32_32x32x16_bf16 {vr(SC,16)}, {vr(FB+4*t,4)}, {vr(FQ3+4*t,4)}, {vr(SC,16)}")
        self.stamp(9)
        a(f"v_max3_f32 v40, v{SC}, v{SC+1}, v{SC+2}")
        a(f"v_max3_f32 v43, v{SC+3}, v{SC+4}, v{SC+5}")
        a(f"v_max3_f32 v40, v40, v{SC+6}, v{SC+7}")
        a(f"v_max3_f32 v43, v43, v{SC+8}, v{SC+9}")
        a(f"v_max3_f32 v40, v40, v{SC+10}, v{SC+11}")
        a(f"v_max3_f32 v43, v43, v{SC+12}, v{SC+13}")
        a(f"v_max3_f32 v40, v40, v{SC+14}, v{SC+15}")
        a("v_max_f32 v40, v40, v43")
        a("ds_write_b32 v42, v40")
        a("s_waitcnt lgkmcnt(0)")
        a("s_barrier")
        a("ds_read_b128 v[16:19], v41")
        a("ds_read_b128 v[20:23], v41 offset:16")
        a("s_waitcnt lgkmcnt(0)")
        a("v_max3_f32 v40, v16, v17, v18")
        a("v_max3_f32 v43, v19, v20, v21")
        a("v_max3_f32 v40, v40, v22, v23")
        a("v_max_f32 v40, v40, v43")
        a(f"v_mul_f32 v52, s{S_T7}, v40")
        for i in range(16): a(f"v_fma_f32 v{SC+i}, v{SC+i}, s{S_T7}, -v52")
        for i in range(16): a(f"v_exp_f32 v{SC+i}, v{SC+i}")
        for i in range(8): a(f"v_cvt_pk_bf16_f32 v{16+i}, v{SC+2*i}, v{SC+2*i+1}")
        a("ds_write_b128 v24, v[16:19]")
        a("ds_write_b128 v24, v[20:23] offset:1024")
        a("s_waitcnt lgkmcnt(0)")
        a("s_barrier")
        self.stamp(4)
        self.pk_tree(SC, 16, 2)
        a(f"v_add_f32 v43, v{SC}, v{SC+1}")
        a(f"ds_write_b32 v42, v43 offset:{LB-MX}")
        a("s_waitcnt lgkmcnt(0)")
        a("s_barrier")
        a(f"ds_read_b128 v[36:39], v41 offset:{LB-MX}")
        a(f"ds_read_b128 v[48:51], v41 offset:{LB-MX+16}")
        a("v_mov_b32 v54, 0")
        a("v_mov_b32 v55, v5")
        a("s_waitcnt lgkmcnt(0)")
        a("v_pk_add_f32 v[36:37], v[36:37], v[38:39]")
        a("v_pk_add_f32 v[48:49], v[48:49], v[50:51]")
        a("v_pk_add_f32 v[36:37], v[36:37], v[48:49]")
        a("v_add_f32 v53, v36, v37")
        a("s_barrier")
        a(f"s_cmp_lg_u32 s{S_WAVE}, 0")
        a("s_cbranch_scc1 L_T_roles")
        a("s_mov_b32 exec_hi, 0")
        a(f"buffer_store_dwordx4 v[52:55], v34, {srd(SRD_WS)}, s{S_T5} offen sc1")
        self.exec_all()
        self.stamp(10)
        a("s_branch L_T_roles")
        a.label("L_T_pvw")
        self.load_epoch()
        G = 64
        a("v_and_b32 v13, 255, v0")
        a("v_lshrrev_b32 v12, 2, v13")
        a("v_mul_u32_u24 v12, 192, v12")
        a("v_and_b32 v14, 3, v13")
        a("v_lshl_add_u32 v12, v14, 4, v12")
        a(f"s_mul_i32 s{S_T0}, s{S_B}, 49152")
        a(f"s_add_u32 s{S_T0}, s{S_T0}, {hex(H2)}")
        offs = [S_T0, S_T1, S_T2, S_T4]
        for rep in range(1, 4): a(f"s_add_u32 s{offs[rep]}, s{S_T0}, {rep*12288}")
        a("v_lshrrev_b32 v16, 5, v13")
        a("v_and_b32 v14, 3, v16")
        a("v_lshlrev_b32 v14, 2, v14")
        a("v_lshrrev_b32 v15, 2, v16")
        a("v_lshl_add_u32 v14, v15, 1, v14")
        a("v_and_b32 v15, 7, v13")
        a("v_lshlrev_b32 v15, 1, v15")
        a("v_xor_b32 v14, v14, v15")
        a("v_lshlrev_b32 v14, 4, v14")
        a("v_lshl_add_u32 v14, v16, 8, v14")
        a("v_bfe_u32 v15, v13, 3, 2")
        a("v_lshl_add_u32 v14, v15, 13, v14")
        a(f"v_add_u32 v14, {QB}, v14")
        a("v_xor_b32 v15, 16, v14")
        TA = 16
        a("v_bfe_u32 v30, v1, 2, 2")
        a("v_bfe_u32 v31, v1, 1, 1")
        a("v_bfe_u32 v32, v1, 4, 1")
        a("v_lshl_add_u32 v31, v32, 1, v31")
        a("v_lshl_add_u32 v31, v30, 2, v31")
        a("v_lshlrev_b32 v31, 4, v31")
        a("v_and_b32 v33, 1, v1")
        a("v_lshl_add_u32 v31, v33, 3, v31")
        a("v_lshl_add_u32 v33, v32, 2, v30")
        a("v_lshl_add_u32 v33, v45, 4, v33")
        a("v_lshl_add_u32 v31, v33, 8, v31")
        a(f"s_and_b32 s{S_T6}, s{S_WAVE}, 3")
        a(f"s_lshl_b32 s{S_T5}, s{S_T6}, 6")
        a(f"v_xor_b32 v31, s{S_T5}, v31")
        for i1 in range(2):
            for aa in range(2):
                a(f"v_xor_b32 v{TA+2*i1+aa}, {32*i1 + 16*aa}, v31")
                a(f"v_add_u32 v{TA+4+2*i1+aa}, 0x10000, v{TA+2*i1+aa}")
        a("v_lshlrev_b32 v24, 10, v45")
        a("v_lshl_add_u32 v24, v32, 9, v24")
        a("v_lshl_add_u32 v24, v3, 4, v24")
        a(f"v_add_u32 v24, {PB}, v24")
        a("v_lshlrev_b32 v33, 17, v2")
        a("v_lshl_add_u32 v33, v3, 4, v33")
        a(f"s_lshl_b32 s{S_T3}, s{S_B}, 20")
        a(f"s_lshl_b32 s{S_T5}, s{S_S}, 10")
        a(f"s_add_u32 s{S_T3}, s{S_T3}, s{S_T5}")
        a(f"s_lshl_b32 s{S_T5}, s{S_T6}, 8")
        a(f"s_add_u32 s{S_T3}, s{S_T3}, s{S_T5}")
        a(f"s_add_u32 s{S_T3}, s{S_T3}, {hex(H3)}")
        a("s_waitcnt vmcnt(0)")
        self.tag_ready()
        a("s_barrier")
        self.stamp(1)
        loads = []
        for rep in range(4):
            for p in range(3): loads.append((G + 12 * rep + 4 * p, 12, f"s{offs[rep]}", 64 * p))
        self.sweep(loads, "t32", 40, 42, 43, mid=lambda: a("s_barrier"))
        self.stamp(2)
        for rep in range(4):
            b = G + 12 * rep
            a(f"v_mov_b32 v{b+3}, v{b+8}")
            a(f"v_mov_b32 v{b+7}, v{b+9}")
            a0, a1 = (14, 15) if (rep & 1) == 0 else (15, 14)
            a(f"ds_write_b128 v{a0}, {vr(b,4)} offset:{2048*rep}")
            a(f"ds_write_b128 v{a1}, {vr(b+4,4)} offset:{2048*rep}")
        a("s_waitcnt lgkmcnt(0)")
        a("s_barrier")
        self.stamp(3)
        BFR, PF, OA, OUT = 128, 64, 96, 48
        def rdplane(q):
            for i1 in range(2):
                for kt in range(4):
                    for aa in range(2):
                        i = 2 * q + i1
                        a(f"ds_read_b64_tr_b16 {vr(BFR+16*i+4*kt+2*aa,2)}, v{TA+(4 if q>=2 else 0)+2*i1+aa} offset:{32768*(q&1) + 8192*kt + 2048*aa}")
        rdplane(0); rdplane(1)
        a("s_barrier")
        rdplane(2)
        a("s_barrier")
        rdplane(3)
        a("s_barrier")
        a("s_waitcnt lgkmcnt(0)")
        a("s_barrier")
        self.stamp(4)
        for hh in range(2):
            for kt in range(4): a(f"ds_read_b128 {vr(PF+16*hh+4*kt,4)}, v24 offset:{2048*kt+256*hh}")
        for hh in range(2):
            acc = OA if hh == 0 else 16
            for kt in range(4):
                if hh == 0: a(f"s_waitcnt lgkmcnt({7-kt})")
                elif kt == 0: a("s_waitcnt lgkmcnt(0)")
                for i in range(8):
                    c = "0" if kt == 0 else vr(acc + 4 * i, 4)
                    a(f"v_mfma_f32_16x16x32_bf16 {vr(acc+4*i,4)}, {vr(PF+16*hh+4*kt,4)}, {vr(BFR+16*i+4*kt,4)}, {c}")
                    if hh == 1 and kt < 4 and i == 7:
                        r = kt
                        for u in range(4): a(f"v_cvt_pk_bf16_f32 v{OUT+4*r+u}, v{OA+8*u+r}, v{OA+8*u+4+r}")
                        a(f"buffer_store_dwordx4 {vr(OUT+4*r,4)}, v12, {srd(SRD_WS)}, s{S_T3} offen sc1")
                        a(f"s_add_u32 s{S_T3}, s{S_T3}, {32768 if r < 3 else 13*32768}")
            if hh == 0:
                a("v_mov_b32 v12, v33")
                a("s_barrier")
        for r in range(4):
            for u in range(4): a(f"v_cvt_pk_bf16_f32 v{OA+4*r+u}, v{16+8*u+r}, v{16+8*u+4+r}")
            a(f"buffer_store_dwordx4 {vr(OA+4*r,4)}, v12, {srd(SRD_WS)}, s{S_T3} offen sc1")
            if r < 3: a(f"s_add_u32 s{S_T3}, s{S_T3}, 32768")
        self.stamp(5)
        a("s_waitcnt vmcnt(0)")
        a("s_barrier")
        a.label("L_T_roles")
        a(f"s_and_b32 s{S_T0}, s{S_P0}, 15")
        a(f"s_cmp_ge_u32 s{S_T0}, 8")
        a("s_cbranch_scc1 L_T_notD")
        self.build_D()
        self.finish()
        a.label("L_T_notD")
        a(f"s_cmp_ge_u32 s{S_T0}, 15")
        a("s_cbranch_scc1 L_T_end")
        self.build_E()
        a.label("L_T_end")
        self.finish()

    def build_D(self):
        a = self.a
        S_KG, S_MS = S_P1, S_P2
        WT, G, F, BF, ACC, R = 8, 40, 48, 56, 72, 80
        PBASE = 98304
        a(f"s_lshr_b32 s{S_T1}, s{S_P0}, 4")
        a(f"s_lshl_b32 s{S_T1}, s{S_T1}, 3")
        a(f"s_add_u32 s{S_T1}, s{S_T1}, s{S_T0}")
        a(f"s_lshr_b32 s{S_KG}, s{S_T1}, 4")
        a(f"s_and_b32 s{S_MS}, s{S_T1}, 15")
        self.mk_srd(SRD_A, S_WO, 4 << 20)
        self.w32_setup(1024, 100, 101, 102, 103)
        a(f"s_lshl_b32 s{S_T2}, s{S_KG}, 3")
        a(f"s_add_u32 s{S_T2}, s{S_T2}, s{S_WAVE}")
        a(f"s_lshl_b32 s{S_T0}, s{S_T2}, 17")
        a(f"s_lshl_b32 s{S_T1}, s{S_MS}, 6")
        a(f"s_add_u32 s{S_T0}, s{S_T0}, s{S_T1}")
        a(f"s_lshl_b32 s{S_T4}, s{S_WAVE}, 13")
        self.w32_dma(SRD_A, S_T0, S_T4, 1024, 100, 101)
        a(f"v_add_u32 v102, s{S_T4}, v102")
        a(f"v_add_u32 v103, s{S_T4}, v103")
        self.part_addr(104, 105, PBASE)
        a("v_lshrrev_b32 v106, 2, v3")
        a("v_lshlrev_b32 v106, 9, v106")
        a("v_lshl_add_u32 v106, v2, 6, v106")
        a("v_and_b32 v107, 3, v3")
        a("v_lshl_add_u32 v106, v107, 4, v106")
        a(f"s_lshl_b32 s{S_T2}, s{S_T2}, 11")
        a(f"s_add_u32 s{S_T2}, s{S_T2}, {hex(H4)}")
        a("v_and_b32 v107, 31, v1")
        a("v_lshlrev_b32 v107, 4, v107")
        a(f"s_lshl_b32 s{S_T3}, s{S_KG}, 13")
        a(f"s_lshl_b32 s{S_T1}, s{S_MS}, 9")
        a(f"s_add_u32 s{S_T3}, s{S_T3}, s{S_T1}")
        a(f"s_add_u32 s{S_T3}, s{S_T3}, {hex(H5)}")
        a("s_waitcnt vmcnt(0)")
        self.w32_read(WT, 102, 103, "V")
        a("s_waitcnt lgkmcnt(0)")
        a("s_barrier")
        self.stamp(6)
        self.sweep([(G + 4 * aa, 106, f"s{S_T2}", 256 * aa) for aa in range(2)], "f24", 108, 109, 110)
        self.stamp(7)
        self.frag_cvt(F, G, G + 4)
        self.bcast_frags(BF, F)
        for ks in range(4):
            for t in range(2):
                c = "0" if ks == 0 else vr(ACC + 4 * t, 4)
                a(f"v_mfma_f32_16x16x32_bf16 {vr(ACC+4*t,4)}, {vr(WT+8*ks+4*t,4)}, {vr(BF+4*ks,4)}, {c}")
        self.exec_mask(0x11111111)
        for t in range(2): a(f"ds_write_b128 v104, {vr(ACC+4*t,4)} offset:{64*t}")
        self.exec_all()
        a("s_waitcnt lgkmcnt(0)")
        a("s_barrier")
        a(f"s_cmp_lg_u32 s{S_WAVE}, 0")
        a("s_cbranch_scc1 L_D_done")
        self.reduce4(R, 105)
        self.cross_sum([R, R + 1, R + 2, R + 3], R + 4)
        self.tag24(R + 8, R)
        a("s_mov_b32 exec_hi, 0")
        a(f"buffer_store_dwordx4 {vr(R+8,4)}, v107, {srd(SRD_WS)}, s{S_T3} offen sc1")
        self.exec_all()
        self.stamp(8)
        a.label("L_D_done")

    def build_E(self):
        a = self.a
        S_FS = S_P1
        WT, G, F, BF, ACC, XS, ONE = 8, 72, 104, 108, 124, 148, 156
        PBASE = 98304
        SBASE = PBASE + 4096
        CBASE = PBASE + 8192
        a(f"s_lshr_b32 s{S_T1}, s{S_P0}, 4")
        a(f"s_mul_i32 s{S_T1}, s{S_T1}, 7")
        a(f"s_add_u32 s{S_T1}, s{S_T1}, s{S_T0}")
        a(f"s_sub_u32 s{S_FS}, s{S_T1}, 8")
        a(f"s_cmp_ge_u32 s{S_WAVE}, 4")
        a(f"s_cselect_b32 s{SRD_A}, s{S_WU}, s{S_WG}")
        a(f"s_cselect_b32 s{SRD_A+1}, s{S_WU+1}, s{S_WG+1}")
        a(f"s_and_b32 s{SRD_A+1}, s{SRD_A+1}, 0xffff")
        a(f"s_mov_b32 s{SRD_A+2}, {512*3584}")
        a(f"s_mov_b32 s{SRD_A+3}, 0x20000")
        self.w32_setup(3584, 160, 161, 162, 163)
        a(f"s_and_b32 s{S_T2}, s{S_WAVE}, 3")
        a(f"s_mul_i32 s{S_T0}, s{S_T2}, {128*3584}")
        a(f"s_lshl_b32 s{S_T1}, s{S_FS}, 6")
        a(f"s_add_u32 s{S_T0}, s{S_T0}, s{S_T1}")
        a(f"s_lshl_b32 s{S_T4}, s{S_WAVE}, 13")
        self.w32_dma(SRD_A, S_T0, S_T4, 3584, 160, 161)
        self.part_addr(164, 165, PBASE)
        a(f"s_cmp_ge_u32 s{S_WAVE}, 4")
        a("s_cbranch_scc1 L_E_red")
        a(f"v_add_u32 v162, s{S_T4}, v162")
        a(f"v_add_u32 v163, s{S_T4}, v163")
        self.x_row_stats(176, 192, 170, 172, 7)
        a("v_lshrrev_b32 v166, 2, v3")
        a("v_and_b32 v167, 3, v3")
        a("v_lshlrev_b32 v168, 10, v166")
        a("v_lshl_add_u32 v168, v2, 6, v168")
        a("v_lshl_add_u32 v168, v167, 3, v168")
        a(f"s_lshl_b32 s{S_T0}, s{S_WAVE}, 8")
        for t in range(2): a(f"buffer_load_dwordx2 {vr(F+2*t,2)}, v168, {srd(SRD_X)}, s{S_T0} offen offset:{32*t}")
        a("v_lshlrev_b32 v168, 7, v166")
        a("v_lshl_add_u32 v168, v2, 9, v168")
        a("v_lshl_add_u32 v168, v167, 4, v168")
        a(f"s_lshl_b32 s{S_T0}, s{S_WAVE}, 11")
        so = [S_T3, S_T4, S_T5, S_T6]
        for kg in range(4): a(f"s_add_u32 s{so[kg]}, s{S_T0}, {hex(H5 + kg*8192)}")
        a("v_lshlrev_b32 v169, 6, v166")
        a("v_lshlrev_b32 v174, 3, v166")
        a(f"s_lshl_b32 s{S_T0}, s{S_WAVE}, 5")
        a(f"s_add_u32 s{S_T0}, s{S_T0}, {SBASE}")
        a(f"v_add_u32 v174, s{S_T0}, v174")
        for i in range(4): a(f"v_mov_b32 v{ONE+i}, 0x3f803f80")
        a("s_waitcnt vmcnt(0)")
        self.x_row_stats2(176, 192, 170, 172, want_var=False)
        a("ds_bpermute_b32 v170, v169, v170")
        for i in range(4): self.unpack(XS + 2 * i, F + i)
        a("s_waitcnt lgkmcnt(0)")
        for i in range(8): a(f"v_sub_f32 v{XS+i}, v{XS+i}, v170")
        a("s_barrier")
        self.w32_read(WT, 162, 163, "Q")
        self.w32_read(WT + 32, 162, 163, "Q", 32768)
        a("s_waitcnt lgkmcnt(0)")
        for m in range(2):
            for ks in range(4):
                for t in range(2):
                    c = "0" if ks == 0 else vr(ACC + 8 * m + 4 * t, 4)
                    a(f"v_mfma_f32_16x16x32_bf16 {vr(ACC+8*m+4*t,4)}, {vr(WT+32*m+8*ks+4*t,4)}, {vr(ONE,4)}, {c}")
        self.exec_mask(0x11111111)
        for m in range(2):
            for t in range(2): a(f"ds_write_b128 v164, {vr(ACC+8*m+4*t,4)} offset:{CBASE-PBASE+2048*m+64*t}")
        self.exec_all()
        a("s_waitcnt lgkmcnt(0)")
        a("s_barrier")
        self.stamp(6)
        self.sweep([(G + 8 * kg + 4 * t, 168, f"s{so[kg]}", 64 * t) for kg in range(4) for t in range(2)], "f24", 171, 172, 173)
        self.stamp(7)
        for i in range(0, 8, 2): a(f"v_pk_add_f32 {vr(G+24+i,2)}, {vr(G+24+i,2)}, {vr(XS+i,2)}")
        self.pk_tree(G, 32, 8)
        self.frag_cvt(F, G, G + 4)
        self.bcast_frags(BF, F)
        for ks in range(4):
            for m in range(2):
                for t in range(2):
                    c = "0" if ks == 0 else vr(ACC + 8 * m + 4 * t, 4)
                    a(f"v_mfma_f32_16x16x32_bf16 {vr(ACC+8*m+4*t,4)}, {vr(WT+32*m+8*ks+4*t,4)}, {vr(BF+4*ks,4)}, {c}")
            c = "0" if ks == 0 else vr(ACC + 16, 4)
            a(f"v_mfma_f32_16x16x32_bf16 {vr(ACC+16,4)}, {vr(ONE,4)}, {vr(BF+4*ks,4)}, {c}")
            c = "0" if ks == 0 else vr(ACC + 20, 4)
            a(f"v_mfma_f32_16x16x32_bf16 {vr(ACC+20,4)}, {vr(BF+4*ks,4)}, {vr(BF+4*ks,4)}, {c}")
        self.exec_mask(0x11111111)
        for m in range(2):
            for t in range(2): a(f"ds_write_b128 v164, {vr(ACC+8*m+4*t,4)} offset:{2048*m+64*t}")
        self.exec_mask(0x00100001, 0x10000100)
        a(f"ds_write2_b32 v174, v{ACC+16}, v{ACC+20} offset0:0 offset1:1")
        self.exec_all()
        a("s_waitcnt lgkmcnt(0)")
        a("s_barrier")
        a("s_branch L_E_done")
        a.label("L_E_red")
        R, CS, ST = 8, 24, 40
        a("v_and_b32 v60, 31, v1")
        a("v_lshlrev_b32 v60, 4, v60")
        a(f"s_lshl_b32 s{S_P3}, s{S_FS}, 9")
        a(f"s_add_u32 s{S_P3}, s{S_P3}, {hex(H6)}")
        a("v_bfe_u32 v61, v1, 3, 2")
        a("v_lshlrev_b32 v61, 3, v61")
        a(f"v_add_u32 v61, {SBASE}, v61")
        a("s_waitcnt vmcnt(0)")
        a("s_barrier")
        a("s_barrier")
        for aa in range(4): a(f"ds_read_b128 {vr(CS+4*aa,4)}, v165 offset:{CBASE-PBASE+512*aa}")
        a("s_waitcnt lgkmcnt(0)")
        self.pk_tree(CS, 16, 4)
        a("s_barrier")
        a(f"s_cmp_lg_u32 s{S_WAVE}, 4")
        a("s_cbranch_scc1 L_E_done")
        for w in range(4): a(f"ds_read_b64 {vr(ST+2*w,2)}, v61 offset:{32*w}")
        for aa in range(4): a(f"ds_read_b128 {vr(R+4*aa,4)}, v165 offset:{512*aa}")
        a("s_waitcnt lgkmcnt(4)")
        self.pk_tree(ST, 8, 2)
        a(f"v_mul_f32 v{ST}, 0x3b000000, v{ST}")
        a(f"v_mul_f32 v{ST+2}, v{ST}, v{ST}")
        a(f"v_mov_b32 v{ST+3}, 0x3b000000")
        a(f"v_fma_f32 v{ST+2}, v{ST+1}, v{ST+3}, -v{ST+2}")
        a(f"v_max_f32 v{ST+2}, 0, v{ST+2}")
        a(f"v_add_f32 v{ST+2}, 0x3727c5ac, v{ST+2}")
        a(f"v_rsq_f32 v{ST+2}, v{ST+2}")
        a("s_waitcnt lgkmcnt(0)")
        self.pk_tree(R, 16, 4)
        for i in (0, 2): a(f"v_pk_fma_f32 {vr(R+i,2)}, {vr(CS+i,2)}, {vr(ST,2)}, {vr(R+i,2)} op_sel_hi:[1,0,1] neg_lo:[1,0,0] neg_hi:[1,0,0]")
        for i in (0, 2): a(f"v_pk_mul_f32 {vr(R+i,2)}, {vr(R+i,2)}, {vr(ST+2,2)} op_sel_hi:[1,0]")
        for r in range(4): a(f"v_mul_f32 v{R+8+r}, 0xbfb8aa3b, v{R+r}")
        for r in range(4): a(f"v_mov_b32 v{R+4+r}, v{R+r}")
        for r in range(4): a(f"v_exp_f32 v{R+8+r}, v{R+8+r}")
        for r in range(4): a(f"v_permlane32_swap_b32 v{R+4+r}, v{R+12+r}")
        for r in range(4): a(f"v_add_f32 v{R+8+r}, 1.0, v{R+8+r}")
        for r in range(4): a(f"v_rcp_f32 v{R+8+r}, v{R+8+r}")
        for r in range(4): a(f"v_mul_f32 v{R+8+r}, v{R+8+r}, v{R+r}")
        for r in range(4): a(f"v_mul_f32 v{R+8+r}, v{R+8+r}, v{R+12+r}")
        self.tag24(R + 4, R + 8)
        a("s_mov_b32 exec_hi, 0")
        a(f"buffer_store_dwordx4 {vr(R+4,4)}, v60, {srd(SRD_WS)}, s{S_P3} offen sc1")
        self.exec_all()
        self.stamp(8)
        a.label("L_E_done")

if __name__ == "__main__":
    import argparse
    ap = argparse.ArgumentParser()
    ap.add_argument("-o", default="sequential_preLN__compressed_kv_cla__swiglu_ffn__decode.s")
    ap.add_argument("--stamps", action="store_true")
    ap.add_argument("--t_first", type=int, default=0)
    ap.add_argument("--t_sweep", type=int, default=8)
    args = ap.parse_args()
    open(args.o, "w").write(Gen(stamps=args.stamps, t_first=args.t_first, t_sweep=args.t_sweep).build())
```

```python
import sys, os
sys.path.insert(0, os.path.dirname(os.path.abspath(__file__)))
from emit import Asm

KNAME = "sequential_preLN__compressed_kv_cla__swiglu_ffn__decode_kernel"
REF = "sequential_preLN__compressed_kv_cla__swiglu_ffn__decode.s.ref"

H1 = 0x1000
H2 = 0x50000
H4 = 0xB0000
H5 = 0x80000
H6 = 0x500000
FL3 = 0xA0000
H3 = 0x100000
STAMP = 0x800000
WS_USED = 0x1000000
TAGK = 0x9E3779B1
MAXIT = 400000
ROLEB = 65536
RPB = 32768

S_X, S_CKV, S_WQ, S_WUK, S_WUV, S_WO, S_BX, S_WG, S_WU, S_WD, S_OUT, S_DBG, S_WS = [4 + 2 * i for i in range(13)]
S_CNT = 30
SRD_WS, SRD_A, SRD_B, SRD_X, SRD_OUT = 32, 36, 40, 44, 48
S_WAVE, S_P0, S_P1, S_P2, S_P3 = 53, 54, 55, 56, 57
S_T0, S_T1, S_T2, S_T3 = 58, 59, 60, 61
S_E0 = 62
S_SELLO, S_SELHI, S_CK0, S_CK1 = 64, 65, 66, 67
S_TS0 = 68
S_M16 = 72
S_T4, S_T5, S_T6, S_T7 = 73, 74, 75, 76
S_STAMP = 78
NSTAMP = 12

def srd(n): return f"s[{n}:{n+3}]"
def vr(a, n): return f"v[{a}:{a+n-1}]"

class Gen:
    def __init__(self, stamps=False, **kw):
        self.a = Asm()
        self.stamps = stamps
        self.t_first = kw.get("t_first", 0)
        self.t_sweep = kw.get("t_sweep", 8)
        self.t_delay = kw.get("t_delay", 1)
        self.role_early = kw.get("role_early", 0)
        self.prefetch = kw.get("prefetch", "nt")
        self.npf = 10 if self.prefetch else 0
        self.role_fl = kw.get("role_fl", "nt")
        self.pf_late = kw.get("pf_late", 1)
        self.role_lead = kw.get("role_lead", 0)
        self.touch = kw.get("touch", 1)
        self.w_delay = kw.get("w_delay", 1)

    def stamp(self, i):
        if not self.stamps: return
        self.a(f"s_memrealtime s[{S_STAMP+2*i}:{S_STAMP+2*i+1}]")
        self.a("s_waitcnt lgkmcnt(0)")

    def mk_srd(self, dst, ptr, size):
        a = self.a
        a(f"s_mov_b32 s{dst}, s{ptr}")
        a(f"s_and_b32 s{dst+1}, s{ptr+1}, 0xffff")
        a(f"s_mov_b32 s{dst+2}, {hex(size)}")
        a(f"s_mov_b32 s{dst+3}, 0x20000")

    def exec_mask(self, lo, hi=None):
        hi = lo if hi is None else hi
        self.a(f"s_mov_b32 exec_lo, {hex(lo)}\ns_mov_b32 exec_hi, {hex(hi)}")
    def exec_all(self):
        self.a("s_mov_b64 exec, -1")

    def transpose_x4(self, src, dst):
        for jj in range(8):
            t, e = jj >> 1, jj & 1
            for u in range(4):
                self.a(f"v_perm_b32 v{dst+4*jj+u}, v{src+4*(2*u+1)+t}, v{src+4*(2*u)+t}, s{S_SELHI if e else S_SELLO}")

    def tag24(self, dst, src):
        for r in range(4):
            self.a(f"v_perm_b32 v{dst+r}, v{src+r}, v5, s{S_TS0+r}")

    def sweep(self, loads, kind, vt0, vt1, vacc, mid=None, restore=True, post=None):
        a = self.a
        lp = a.newlabel("poll"); ld = a.newlabel("pdone"); lc = a.newlabel("pchk")
        a(f"s_mov_b32 s{S_CNT}, {MAXIT}")
        def issue():
            for (d, vo, so, imm) in loads:
                a(f"buffer_load_dwordx4 {vr(d,4)}, v{vo}, {srd(SRD_WS)}, {so} offen offset:{imm} sc1")
        if mid is not None:
            issue(); mid()
            a(f"s_branch {lc}")
        a.label(lp)
        issue()
        a.label(lc)
        n = len(loads)
        first = True
        for i, (d, vo, so, imm) in enumerate(loads):
            a(f"s_waitcnt vmcnt({n-1-i})")
            if kind == "t32":
                src = d + 3
            else:
                a(f"v_perm_b32 v{vt0}, v{d+1}, v{d}, s{S_CK0}")
                a(f"v_perm_b32 v{vt1}, v{d+3}, v{d+2}, s{S_CK1}")
                a(f"v_or_b32 v{vt0}, v{vt0}, v{vt1}")
                src = vt0
            if first:
                a(f"v_xor_b32 v{vacc}, v{src}, v5"); first = False
            else:
                a(f"v_bitop3_b32 v{vacc}, v{vacc}, v{src}, v5 bitop3:0xf6")
            if post is not None: post(i, d)
        a(f"v_cmp_ne_u32 vcc, 0, v{vacc}")
        a("s_and_b64 exec, exec, vcc")
        a(f"s_cbranch_scc0 {ld}")
        a(f"s_sub_u32 s{S_CNT}, s{S_CNT}, 1")
        a(f"s_cbranch_scc0 {lp}")
        a.label(ld)
        if restore: self.exec_all()

    def row_allreduce(self, op, v):
        for n in (8, 4, 2, 1):
            self.a(f"{op}_dpp v{v}, v{v}, v{v} row_ror:{n} row_mask:0xf bank_mask:0xf")

    def cross_sum(self, regs, tmp, which=32, op="v_add_f32"):
        a = self.a
        for i, r in enumerate(regs): a(f"v_mov_b32 v{tmp+i}, v{r}")
        for i, r in enumerate(regs): a(f"v_permlane{which}_swap_b32 v{r}, v{tmp+i}")
        for i, r in enumerate(regs): a(f"{op} v{r}, v{r}, v{tmp+i}")

    def unpack(self, dst, src):
        self.a(f"v_lshlrev_b32 v{dst}, 16, v{src}")
        self.a(f"v_and_b32 v{dst+1}, s{S_M16}, v{src}")

    def pk_tree(self, base, n, stop):
        st = n // 2
        while st >= stop:
            for i in range(0, st, 2):
                self.a(f"v_pk_add_f32 {vr(base+i,2)}, {vr(base+i,2)}, {vr(base+st+i,2)}")
            st //= 2

    def x_row_stats(self, XS, U, vm, vv, vaddr, want_var=True):
        a = self.a
        a(f"v_lshlrev_b32 v{vaddr}, 10, v2")
        a(f"v_lshl_add_u32 v{vaddr}, v3, 4, v{vaddr}")
        for i in range(4):
            a(f"buffer_load_dwordx4 {vr(XS+4*i,4)}, v{vaddr}, {srd(SRD_X)}, 0 offen offset:{256*i}")
    def x_row_stats2(self, XS, U, vm, vv, want_var=True):
        a = self.a
        for i in range(16): self.unpack(U + 2 * i, XS + i)
        for i in range(0, 16, 2): a(f"v_pk_add_f32 {vr(XS+i,2)}, {vr(U+i,2)}, {vr(U+16+i,2)}")
        self.pk_tree(XS, 16, 2)
        a(f"v_add_f32 v{vm}, v{XS}, v{XS+1}")
        self.row_allreduce("v_add_f32", vm)
        a(f"v_mul_f32 v{vm}, 0x3b000000, v{vm}")
        if want_var:
            a(f"v_mov_b32 v{vm+1}, v{vm}")
            assert vm % 2 == 0
            for i in range(0, 32, 2): a(f"v_pk_add_f32 {vr(U+i,2)}, {vr(U+i,2)}, {vr(vm,2)} neg_lo:[0,1] neg_hi:[0,1]")
            for i in range(0, 8, 2): a(f"v_pk_mul_f32 {vr(XS+i,2)}, {vr(U+i,2)}, {vr(U+i,2)}")
            for i in range(8, 32, 2): a(f"v_pk_fma_f32 {vr(XS+(i&7),2)}, {vr(U+i,2)}, {vr(U+i,2)}, {vr(XS+(i&7),2)}")
            self.pk_tree(XS, 8, 2)
            a(f"v_add_f32 v{vv}, v{XS}, v{XS+1}")
            self.row_allreduce("v_add_f32", vv)
            a(f"v_mul_f32 v{vv}, 0x3b000000, v{vv}")

    def finish(self):
        a = self.a
        if self.stamps:
            a("s_waitcnt vmcnt(0)")
            self.stamp(NSTAMP - 1)
            a("s_mov_b64 exec, 1")
            for i in range(NSTAMP): a(f"v_mov_b32 v{8+i}, s{S_STAMP+2*i}")
            a(f"s_lshl_b32 s{S_T0}, s2, 3")
            a(f"s_add_u32 s{S_T0}, s{S_T0}, s{S_WAVE}")
            a(f"s_lshl_b32 s{S_T0}, s{S_T0}, 6")
            a(f"s_add_u32 s{S_T0}, s{S_T0}, {hex(STAMP)}")
            for i in range(NSTAMP // 4):
                a(f"buffer_store_dwordx4 {vr(8+4*i,4)}, v6, {srd(SRD_WS)}, s{S_T0} offen offset:{16*i}")
        a("s_endpgm")

    def tag_ready(self):
        self.a(f"v_add_u32 v5, {hex(TAGK)}, v5")

    def build(self):
        a = self.a
        hdr = open(REF).read().split("; @launch")[0]
        a.raw(hdr.rstrip("\n"))
        a.raw("; @launch grid=(256,1,1) block=(512,1,1) lds=163840")
        a.raw('.amdgcn_target "amdgcn-amd-amdhsa--gfx950"')
        a.raw(".text")
        a.raw(f".globl {KNAME}")
        a.raw(".p2align 8")
        a.raw(f".type {KNAME},@function")
        a.raw(f"{KNAME}:")
        a("s_cmp_ge_u32 s2, 256")
        a("s_cbranch_scc1 L_exit")
        a("s_load_dwordx16 s[4:19], s[0:1], 0")
        a("s_load_dwordx8 s[20:27], s[0:1], 64")
        a("s_load_dwordx2 s[28:29], s[0:1], 96")
        if self.stamps:
            for i in range(NSTAMP): a(f"s_mov_b32 s{S_STAMP+2*i}, 0")
        a("v_lshrrev_b32 v4, 6, v0")
        a("v_and_b32 v1, 63, v0")
        a(f"v_readfirstlane_b32 s{S_WAVE}, v4")
        a("v_lshrrev_b32 v2, 4, v1")
        a("v_and_b32 v3, 15, v1")
        a(f"s_mov_b32 s{S_SELLO}, 0x05040100")
        a(f"s_mov_b32 s{S_SELHI}, 0x07060302")
        a(f"s_mov_b32 s{S_CK0}, 0x0c0c0400")
        a(f"s_mov_b32 s{S_CK1}, 0x04000c0c")
        for r in range(4): a(f"s_mov_b32 s{S_TS0+r}, {hex(0x07060500 + r)}")
        a(f"s_mov_b32 s{S_M16}, 0xffff0000")
        a("v_mov_b32 v6, 0")
        a(f"s_and_b32 s{S_T0}, s2, 7")
        a(f"s_lshr_b32 s{S_T1}, s2, 4")
        a(f"s_lshl_b32 s{S_T0}, s{S_T0}, 4")
        a(f"s_add_u32 s{S_P0}, s{S_T0}, s{S_T1}")
        a("s_waitcnt lgkmcnt(0)")
        self.stamp(0)
        self.mk_srd(SRD_WS, S_WS, WS_USED)
        self.mk_srd(SRD_X, S_X, 4096)
        a("s_bitcmp1_b32 s2, 3")
        a("s_cbranch_scc1 L_T")
        self.build_W()
        a.label("L_T")
        self.build_T()
        a.label("L_exit")
        a("s_endpgm")
        a.raw('.section .rodata,"a"')
        a.raw(".p2align 6")
        a.raw(f".amdhsa_kernel {KNAME}")
        a.raw("  .amdhsa_next_free_vgpr 256")
        a.raw("  .amdhsa_next_free_sgpr 102")
        a.raw("  .amdhsa_accum_offset 256")
        a.raw("  .amdhsa_group_segment_fixed_size 0")
        a.raw("  .amdhsa_kernarg_size 104")
        a.raw("  .amdhsa_user_sgpr_count 2")
        a.raw("  .amdhsa_user_sgpr_kernarg_segment_ptr 1")
        a.raw("  .amdhsa_system_sgpr_workgroup_id_x 1")
        a.raw(".end_amdhsa_kernel")
        return a.text()

    def load_epoch(self):
        self.a(f"buffer_load_dword v5, v6, {srd(SRD_WS)}, 0 offen sc1")

    def build_W(self):
        a = self.a
        S_H, S_J = S_P1, S_P2
        UKB = 32768
        XO, WR, WT, ACC = 24, 32, 64, 96
        XS, U = 40, 56
        a(f"s_lshr_b32 s{S_H}, s{S_P0}, 2")
        a(f"s_and_b32 s{S_J}, s{S_P0}, 3")
        a(f"s_lshl_b32 s{S_T2}, s{S_H}, 8")
        a(f"s_cmp_lt_u32 s{S_WAVE}, 2")
        a("s_cbranch_scc1 L_Wi_red")
        a(f"s_cmp_ge_u32 s{S_WAVE}, 6")
        a("s_cbranch_scc1 L_Wi_qa")
        self.mk_srd(SRD_A, S_WQ, 4 << 20)
        a("v_lshlrev_b32 v29, 4, v3")
        a("v_lshl_add_u32 v29, v2, 16, v29")
        a(f"s_sub_u32 s{S_T3}, s{S_WAVE}, 2")
        a(f"s_lshl_b32 s{S_T0}, s{S_J}, 2")
        a(f"s_add_u32 s{S_T0}, s{S_T0}, s{S_T3}")
        a(f"s_lshl_b32 s{S_T1}, s{S_T0}, 18")
        a(f"s_add_u32 s{S_T1}, s{S_T1}, s{S_T2}")
        for i in range(8):
            a(f"buffer_load_dwordx4 {vr(WR+4*i,4)}, v29, {srd(SRD_A)}, s{S_T1} offen nt")
            if i < 7: a(f"s_addk_i32 s{S_T1}, 8192")
        for i in range(4): a(f"v_mov_b32 v{XO+i}, 0x3f803f80")
        a("v_lshlrev_b32 v28, 10, v3")
        a("v_lshl_add_u32 v28, v2, 4, v28")
        a(f"s_lshl_b32 s{S_T1}, s{S_T0}, 6")
        self.exec_mask(0x000f000f)
        a(f"buffer_load_dwordx4 {vr(XO,4)}, v28, {srd(SRD_X)}, s{S_T1} offen")
        self.exec_all()
        self.load_epoch()
        a("s_barrier")
        a("s_branch L_W_q2")
        a.label("L_Wi_red")
        self.x_row_stats(XS, U, 30, 32, 7)
        self.load_epoch()
        a("s_barrier")
        a("s_branch L_W_red2")
        a.label("L_Wi_qa")
        self.mk_srd(SRD_A, S_WUK, 4 << 20)
        self.load_epoch()
        a("v_lshlrev_b32 v7, 2, v2")
        a("v_xor_b32 v7, v7, v3")
        a("v_lshlrev_b32 v7, 4, v7")
        a("v_lshl_add_u32 v152, v2, 13, v7")
        a(f"s_lshl_b32 s{S_T0}, s{S_J}, 1")
        a(f"s_add_u32 s{S_T0}, s{S_T0}, s{S_WAVE}")
        a(f"s_sub_u32 s{S_T0}, s{S_T0}, 6")
        a(f"s_lshl_b32 s{S_T1}, s{S_T0}, 19")
        a(f"s_add_u32 s{S_T1}, s{S_T1}, s{S_T2}")
        a(f"s_and_b32 s{S_T4}, s{S_WAVE}, 1")
        a(f"s_lshl_b32 s{S_T4}, s{S_T4}, 14")
        a(f"s_add_u32 s{S_T4}, s{S_T4}, {UKB}")
        a(f"s_mov_b32 m0, s{S_T4}")
        a(f"s_mov_b32 s{S_T5}, 0")
        a(f"s_mov_b32 s{S_T6}, 0x8000")
        a("s_barrier")
        a.label("L_Wi_qa_loop")
        a(f"v_xor_b32 v153, s{S_T5}, v152")
        for k in range(4):
            a(f"buffer_load_dwordx4 v153, {srd(SRD_A)}, s{S_T1} offen nt lds")
            a("s_addk_i32 m0, 1024")
            a(f"s_add_u32 s{S_T1}, s{S_T1}, s{S_T6}")
        a(f"s_addk_i32 s{S_T5}, 16")
        a(f"s_cmp_lt_u32 s{S_T5}, 64")
        a("s_cbranch_scc1 L_Wi_qa_loop")
        WK, G, BF, ACq, OUT = 8, 72, 104, 120, 136
        a("v_and_b32 v148, 3, v3")
        a("v_lshrrev_b32 v151, 2, v3")
        a("v_xor_b32 v7, v2, v148")
        a("v_lshl_add_u32 v7, v7, 2, v151")
        a("v_lshlrev_b32 v7, 4, v7")
        a("v_lshl_add_u32 v7, v148, 8, v7")
        a("v_lshl_add_u32 v7, v151, 12, v7")
        a(f"v_add_u32 v156, s{S_T4}, v7")
        for r in range(1, 4): a(f"v_xor_b32 v{156+r}, {16*r}, v156")
        a("v_lshlrev_b32 v149, 11, v151")
        a("v_lshl_add_u32 v149, v2, 6, v149")
        a("v_lshl_add_u32 v149, v148, 4, v149")
        a(f"s_lshl_b32 s{S_T2}, s{S_H}, 13")
        a(f"s_add_u32 s{S_T2}, s{S_T2}, {hex(H1)}")
        a("v_mul_u32_u24 v150, 0xc000, v148")
        a("v_lshl_add_u32 v150, v2, 4, v150")
        a("v_lshl_add_u32 v150, v151, 14, v150")
        a(f"s_lshl_b32 s{S_T3}, s{S_H}, 3")
        a(f"s_add_u32 s{S_T3}, s{S_T3}, s{S_T0}")
        a(f"s_lshl_b32 s{S_T3}, s{S_T3}, 6")
        a(f"s_add_u32 s{S_T3}, s{S_T3}, {hex(H2)}")
        a("s_barrier")
        a("s_waitcnt vmcnt(0)")
        self.stamp(1)
        self.tag_ready()
        for t in range(4):
            for r in range(4):
                a(f"ds_read_b128 {vr(WK+16*t+4*r,4)}, v{156+r} offset:{1024*t}")
        a(f"v_mov_b32 v{OUT+3}, v5")
        a(f"v_mov_b32 v{OUT+10}, 0")
        self.sweep([(G + 4 * jj, 149, f"s{S_T2}", 256 * jj) for jj in range(8)], "f24", 152, 153, 154)
        self.stamp(2)
        for r in range(4):
            for u in range(4):
                a(f"v_cvt_pk_bf16_f32 v{BF+4*r+u}, v{G+4*(2*u)+r}, v{G+4*(2*u+1)+r}")
        a("s_waitcnt lgkmcnt(0)")
        for r in range(4):
            for t in range(4):
                c = "0" if r == 0 else vr(ACq + 4 * t, 4)
                a(f"v_mfma_f32_16x16x32_bf16 {vr(ACq+4*t,4)}, {vr(WK+16*t+4*r,4)}, {vr(BF+4*r,4)}, {c}")
        for n in (4, 8):
            for i in range(16):
                a(f"v_add_f32_dpp v{ACq+i}, v{ACq+i}, v{ACq+i} row_ror:{n} row_mask:0xf bank_mask:0xf")
        pos = {0: 0, 1: 1, 2: 2, 3: 8, 4: 4, 5: 5, 6: 6, 7: 9}
        for d in range(8): a(f"v_cvt_pk_bf16_f32 v{OUT+pos[d]}, v{ACq+2*d}, v{ACq+2*d+1}")
        self.exec_mask(0x00f000f0)
        for r in range(3): a(f"v_mov_b32 v{OUT+r}, v{OUT+4+r}")
        self.exec_mask(0x0f000f00)
        for r in range(3): a(f"v_mov_b32 v{OUT+r}, v{OUT+8+r}")
        self.exec_mask(0x0fff0fff)
        a(f"buffer_store_dwordx4 {vr(OUT,4)}, v150, {srd(SRD_WS)}, s{S_T3} offen sc1")
        self.exec_all()
        self.stamp(3)
        a("s_branch L_W_join")
        a.label("L_W_q2")
        a("v_lshlrev_b32 v29, 7, v2")
        a("v_lshl_add_u32 v29, v3, 4, v29")
        a(f"s_lshl_b32 s{S_T0}, s{S_T3}, 12")
        a(f"v_add_u32 v29, s{S_T0}, v29")
        a("s_waitcnt vmcnt(2)")
        self.stamp(1)
        self.transpose_x4(WR, WT)
        a("s_waitcnt vmcnt(1)")
        for jj in range(8):
            a(f"v_mfma_f32_16x16x32_bf16 {vr(ACC+4*jj,4)}, {vr(WT+4*jj,4)}, {vr(XO,4)}, 0")
        self.exec_mask(0x001f001f)
        for jj in range(8):
            a(f"ds_write_b128 v29, {vr(ACC+4*jj,4)} offset:{512*jj}")
        self.exec_all()
        a("s_waitcnt lgkmcnt(0)")
        a("s_barrier")
        self.stamp(2)
        a("s_waitcnt vmcnt(0)")
        self.tag_ready()
        a("s_branch L_W_join")
        a.label("L_W_red2")
        a(f"s_lshl_b32 s{S_T2}, s{S_WAVE}, 11")
        a("v_lshrrev_b32 v33, 2, v1")
        a("v_lshlrev_b32 v33, 7, v33")
        a(f"v_add_u32 v33, s{S_T2}, v33")
        a("v_and_b32 v34, 3, v1")
        a("v_lshl_add_u32 v35, v34, 4, v33")
        a("v_lshlrev_b32 v34, 6, v34")
        a("v_lshlrev_b32 v7, 4, v0")
        a(f"s_lshl_b32 s{S_T1}, s{S_P0}, 11")
        a(f"s_add_u32 s{S_T1}, s{S_T1}, {hex(H1)}")
        a("s_waitcnt vmcnt(1)")
        self.x_row_stats2(XS, U, 30, 32)
        a("v_add_f32 v32, 0x3727c5ac, v32")
        a("v_rsq_f32 v32, v32")
        a("ds_bpermute_b32 v30, v34, v30")
        a("ds_bpermute_b32 v32, v34, v32")
        a("s_waitcnt vmcnt(0) lgkmcnt(0)")
        self.tag_ready()
        a("v_mov_b32 v31, v30")
        a("v_mov_b32 v36, v32\nv_mov_b32 v37, v32")
        self.stamp(1)
        a("s_barrier")
        for p in range(4):
            a(f"ds_read_b128 {vr(40+4*p,4)}, v35 offset:{4096*p}")
            a(f"ds_read_b128 {vr(56+4*p,4)}, v33 offset:{4096*p+64}")
        a("s_waitcnt lgkmcnt(0)")
        self.pk_tree(40, 16, 4)
        self.pk_tree(56, 16, 4)
        for i in (0, 2):
            a(f"v_pk_fma_f32 {vr(40+i,2)}, {vr(56+i,2)}, v[30:31], {vr(40+i,2)} neg_lo:[1,0,0] neg_hi:[1,0,0]")
        for i in (0, 2):
            a(f"v_pk_mul_f32 {vr(40+i,2)}, {vr(40+i,2)}, v[36:37]")
        self.tag24(44, 40)
        a(f"buffer_store_dwordx4 v[44:47], v7, {srd(SRD_WS)}, s{S_T1} offen sc1")
        self.stamp(3)
        a.label("L_W_join")
        a("s_barrier")
        self.build_C()

    def build_C(self):
        a = self.a
        S_H, S_J = S_P1, S_P2
        WR, WT, G, FG, ACC, U, AF, WV = 8, 40, 72, 88, 96, 128, 132, 136
        PS = 576
        RB = 16384
        SB = 12288
        PFR = 160
        self.mk_srd(SRD_A, S_WUV, 4 << 20)
        a("v_lshlrev_b32 v7, 13, v2")
        a("v_lshl_add_u32 v7, v3, 4, v7")
        a(f"s_and_b32 s{S_T2}, s{S_J}, 1")
        a(f"s_lshr_b32 s{S_T0}, s{S_WAVE}, 2")
        a(f"s_lshl1_add_u32 s{S_T0}, s{S_T2}, s{S_T0}")
        a(f"s_lshl_b32 s{S_T0}, s{S_T0}, 18")
        a(f"s_and_b32 s{S_T1}, s{S_WAVE}, 3")
        a(f"s_lshl_b32 s{S_T1}, s{S_T1}, 15")
        a(f"s_add_u32 s{S_T0}, s{S_T0}, s{S_T1}")
        a(f"s_lshl_b32 s{S_T1}, s{S_H}, 8")
        a(f"s_add_u32 s{S_T0}, s{S_T0}, s{S_T1}")
        for i in range(8):
            row = 128 * (i >> 1) + 16 * (i & 1)
            a(f"s_add_u32 s{S_T1}, s{S_T0}, {row*8192}")
            a(f"buffer_load_dwordx4 {vr(WR+4*i,4)}, v7, {srd(SRD_A)}, s{S_T1} offen nt")
        a("v_and_b32 v148, 31, v1")
        a("v_lshlrev_b32 v148, 4, v148")
        a("v_lshrrev_b32 v149, 5, v1")
        a("v_lshl_add_u32 v150, v149, 20, v148")
        a(f"s_lshr_b32 s{S_T4}, s{S_J}, 1")
        a(f"s_lshl_b32 s{S_T0}, s{S_T4}, 21")
        a(f"s_lshl_b32 s{S_T1}, s{S_H}, 15")
        a(f"s_add_u32 s{S_T0}, s{S_T0}, s{S_T1}")
        a(f"s_lshl_b32 s{S_T1}, s{S_WAVE}, 12")
        a(f"s_add_u32 s{S_T0}, s{S_T0}, s{S_T1}")
        a(f"s_and_b32 s{S_T2}, s{S_J}, 1")
        a(f"s_lshl_b32 s{S_T1}, s{S_T2}, 9")
        a(f"s_add_u32 s{S_T0}, s{S_T0}, s{S_T1}")
        a(f"s_add_u32 s{S_T3}, s{S_T0}, {hex(H3)}")
        a("v_bfe_u32 v151, v1, 2, 1")
        a("v_lshlrev_b32 v147, 5, v151")
        a("v_and_b32 v151, 3, v1")
        a("v_add_u32 v147, v147, v151")
        a("v_lshlrev_b32 v151, 9, v147")
        a(f"s_lshl_b32 s{S_T0}, s{S_T4}, 15")
        a(f"s_lshl_b32 s{S_T1}, s{S_H}, 4")
        a(f"s_add_u32 s{S_T0}, s{S_T0}, s{S_T1}")
        a(f"s_lshl_b32 s{S_T1}, s{S_WAVE}, 11")
        a(f"s_add_u32 s{S_T0}, s{S_T0}, s{S_T1}")
        a(f"s_add_u32 s{S_T5}, s{S_T0}, {hex(FL3)}")
        a("v_lshlrev_b32 v147, 3, v147")
        a(f"s_lshl_b32 s{S_T1}, s{S_WAVE}, 5")
        a(f"s_add_u32 s{S_T1}, s{S_T1}, {SB}")
        a(f"v_add_u32 v147, s{S_T1}, v147")
        a("v_lshlrev_b32 v143, 3, v1")
        a(f"v_add_u32 v143, {SB}, v143")
        a("v_lshlrev_b32 v152, 7, v149")
        a(f"s_lshl_b32 s{S_T0}, s{S_WAVE}, 4")
        a(f"v_add_u32 v152, s{S_T0}, v152")
        a(f"v_mul_u32_u24 v153, {8*PS}, v149")
        a("v_add_u32 v153, v153, v148")
        a(f"s_mul_i32 s{S_T0}, s{S_WAVE}, {PS}")
        a(f"v_add_u32 v153, s{S_T0}, v153")
        a(f"v_mul_u32_u24 v154, {PS}, v3")
        a("v_lshl_add_u32 v154, v2, 4, v154")
        a(f"s_lshl_b32 s{S_T0}, s{S_WAVE}, 6")
        a(f"v_add_u32 v154, s{S_T0}, v154")
        a("v_lshlrev_b32 v155, 13, v149")
        a("v_and_b32 v156, 1, v2")
        a("v_lshl_add_u32 v155, v156, 9, v155")
        a("v_lshl_add_u32 v155, v3, 4, v155")
        a(f"s_lshl_b32 s{S_T0}, s{S_WAVE}, 10")
        a(f"s_add_u32 s{S_T0}, s{S_T0}, {RB}")
        a(f"v_add_u32 v155, s{S_T0}, v155")
        a("v_bfe_u32 v156, v1, 2, 1")
        a("v_lshlrev_b32 v156, 13, v156")
        a("v_lshl_add_u32 v156, v149, 12, v156")
        a("v_bfe_u32 v157, v1, 3, 2")
        a("v_lshl_add_u32 v156, v157, 6, v156")
        a("v_and_b32 v157, 3, v1")
        a("v_lshl_add_u32 v156, v157, 4, v156")
        a(f"s_lshl_b32 s{S_T0}, s{S_WAVE}, 8")
        a(f"s_add_u32 s{S_T0}, s{S_T0}, {RB}")
        a(f"v_add_u32 v156, s{S_T0}, v156")
        a(f"s_lshl_b32 s{S_T6}, s{S_H}, 12")
        a(f"s_lshl_b32 s{S_T0}, s{S_T2}, 11")
        a(f"s_add_u32 s{S_T6}, s{S_T6}, s{S_T0}")
        a(f"s_lshl_b32 s{S_T0}, s{S_T4}, 10")
        a(f"s_add_u32 s{S_T6}, s{S_T6}, s{S_T0}")
        a(f"s_lshl_b32 s{S_T0}, s{S_WAVE}, 9")
        a(f"s_add_u32 s{S_T6}, s{S_T6}, s{S_T0}")
        a(f"s_add_u32 s{S_T6}, s{S_T6}, {hex(H4)}")
        self.e_xprep()
        for dd in range(self.w_delay):
            a(f"buffer_load_dword v160, v151, {srd(SRD_WS)}, s{S_T5} offen sc1")
            a("s_waitcnt vmcnt(0)")
        self.d_dma(160)
        self.e_dma(160, 0)
        self.transpose_x4(WR, WT)
        a("s_waitcnt vmcnt(0)")
        a("s_barrier")
        self.stamp(4)
        a("s_mov_b64 exec, 0xff")
        self.sweep([(FG, 151, f"s{S_T5}", 0)], "t32", 144, 145, 146)
        for z in range(4):
            a(f"buffer_load_dwordx4 {vr(G+4*z,4)}, v150, {srd(SRD_WS)}, s{S_T3} offen offset:{1024*z} sc1")
        a("s_mov_b64 exec, 0xff")
        a(f"ds_write_b64 v147, {vr(FG,2)}")
        self.exec_all()
        a("s_waitcnt lgkmcnt(0)")
        self.stamp(5)
        a("s_barrier")
        a(f"ds_read_b64 {vr(FG,2)}, v143")
        a("s_waitcnt lgkmcnt(0)")
        a(f"v_mov_b32 v144, v{FG}")
        self.row_allreduce("v_max_f32", 144)
        self.cross_sum([144], 145, 16, "v_max_f32")
        a(f"v_sub_f32 v146, v{FG}, v144")
        a("v_exp_f32 v146, v146")
        a(f"v_mul_f32 v144, v146, v{FG+1}")
        self.row_allreduce("v_add_f32", 144)
        self.cross_sum([144], 145, 16)
        a("v_rcp_f32 v144, v144")
        a("v_mul_f32 v146, v146, v144")
        for z in range(4): a(f"ds_bpermute_b32 v{WV+2*z}, v152, v146 offset:{4*z}")
        a("s_waitcnt lgkmcnt(0)")
        for z in range(4):
            a(f"s_waitcnt vmcnt({3-z})")
            for d in range(4):
                t = U + 2 * (d & 1) if z else ACC + 2 * d
                self.unpack(t, G + 4 * z + d)
                if z == 0:
                    a(f"v_pk_mul_f32 {vr(ACC+2*d,2)}, {vr(t,2)}, {vr(WV,2)} op_sel_hi:[1,0]")
                else:
                    a(f"v_pk_fma_f32 {vr(ACC+2*d,2)}, {vr(t,2)}, {vr(WV+2*z,2)}, {vr(ACC+2*d,2)} op_sel_hi:[1,0,1]")
        self.stamp(10)
        for d in range(4): a(f"v_cvt_pk_bf16_f32 v{AF+d}, v{ACC+2*d}, v{ACC+2*d+1}")
        a(f"ds_write_b128 v153, {vr(AF,4)}")
        a("s_waitcnt lgkmcnt(0)")
        a("s_barrier")
        a(f"ds_read_b128 {vr(AF,4)}, v154")
        a("s_waitcnt lgkmcnt(0)")
        for jj in range(8):
            a(f"v_mfma_f32_16x16x32_bf16 {vr(ACC+4*jj,4)}, {vr(AF,4)}, {vr(WT+4*jj,4)}, 0")
        for jj in range(8): a(f"v_pk_add_f32 {vr(ACC+4*jj,2)}, {vr(ACC+4*jj,2)}, {vr(ACC+4*jj+2,2)}")
        for jj in range(8): a(f"v_add_f32 v{G+jj}, v{ACC+4*jj}, v{ACC+4*jj+1}")
        a(f"ds_write_b128 v155, {vr(G,4)}")
        a(f"ds_write_b128 v155, {vr(G+4,4)} offset:256")
        a("s_waitcnt lgkmcnt(0)")
        a("s_barrier")
        a(f"s_cmp_ge_u32 s{S_WAVE}, 2")
        a("s_cbranch_scc1 L_C_done")
        for aa in range(4):
            for hp in range(2):
                a(f"ds_read_b128 {vr(8+8*aa+4*hp,4)}, v156 offset:{1024*aa+512*hp}")
        a("s_waitcnt lgkmcnt(0)")
        self.pk_tree(8, 32, 4)
        self.cross_sum([8, 9, 10, 11], 12)
        self.tag24(16, 8)
        a("s_mov_b32 exec_hi, 0")
        a(f"buffer_store_dwordx4 v[16:19], v148, {srd(SRD_WS)}, s{S_T6} offen sc1")
        self.exec_all()
        self.stamp(6)
        a.label("L_C_done")
        a(f"s_and_b32 s{S_T0}, s{S_P0}, 15")
        a(f"s_cmp_ge_u32 s{S_T0}, 8")
        a("s_cbranch_scc1 L_W_notD")
        self.build_D()
        self.finish()
        a.label("L_W_notD")
        a(f"s_cmp_ge_u32 s{S_T0}, 15")
        a("s_cbranch_scc1 L_W_end")
        self.build_E()
        a.label("L_W_end")
        self.finish()

    def e_xprep(self):
        a = self.a
        self.x_row_stats(80, 96, 128, 130, 7)
        a("v_lshrrev_b32 v132, 2, v3")
        a("v_and_b32 v133, 3, v3")
        a("v_lshlrev_b32 v134, 10, v132")
        a("v_lshl_add_u32 v134, v2, 6, v134")
        a("v_lshl_add_u32 v134, v133, 3, v134")
        a(f"s_and_b32 s31, s{S_WAVE}, 3")
        a("s_lshl_b32 s31, s31, 8")
        for t in range(2): a(f"buffer_load_dwordx2 {vr(136+2*t,2)}, v134, {srd(SRD_X)}, s31 offen offset:{32*t}")
        a("v_lshlrev_b32 v132, 6, v132")
        a("s_waitcnt vmcnt(0)")
        self.x_row_stats2(80, 96, 128, 130, want_var=False)
        a("ds_bpermute_b32 v128, v132, v128")
        for i in range(4): self.unpack(244 + 2 * i, 136 + i)
        a("s_waitcnt lgkmcnt(0)")
        for i in range(8): a(f"v_sub_f32 v{244+i}, v{244+i}, v128")

    def l2_prefetch(self, R):
        a = self.a
        fl = self.prefetch if self.prefetch != "plain" else ""
        a(f"s_lshr_b32 s16, s{S_P0}, 4")
        a(f"s_and_b32 s17, s{S_P0}, 15")
        a(f"s_lshl3_add_u32 s17, s17, s{S_WAVE}")
        a("v_and_b32 v8, 31, v1")
        a("v_lshlrev_b32 v8, 4, v8")
        a("v_lshrrev_b32 v9, 5, v1")
        a("v_mul_u32_u24 v7, 3584, v9")
        a("v_add_u32 v7, v7, v8")
        a("s_mul_i32 s31, s16, 448")
        a("s_andn2_b32 s31, s31, 127")
        a(f"s_mul_i32 s52, s17, {4*3584}")
        a("s_add_u32 s31, s31, s52")
        a(f"s_add_u32 s52, s31, {2*3584}")
        self.mk_srd(SRD_A, S_WD, 1792 * 1024)
        self.mk_srd(SRD_B, S_WU, 512 * 3584)
        a("v_lshlrev_b32 v8, 4, v1")
        a(f"s_mul_i32 s16, s16, {224*1024}")
        a("s_min_u32 s17, s17, 111")
        a("s_lshl_b32 s17, s17, 11")
        a("s_add_u32 s16, s16, s17")
        a("s_barrier")
        a(f"buffer_load_dwordx4 {vr(R,4)}, v7, {srd(SRD_B)}, s31 offen {fl}")
        a(f"buffer_load_dwordx4 {vr(R+4,4)}, v7, {srd(SRD_B)}, s52 offen {fl}")
        a(f"buffer_load_dwordx4 {vr(R+8,4)}, v8, {srd(SRD_A)}, s16 offen {fl}")
        a(f"buffer_load_dwordx4 {vr(R+12,4)}, v8, {srd(SRD_A)}, s16 offen offset:1024 {fl}")
        if self.stamps:
            a("s_waitcnt vmcnt(0)")
            self.stamp(6)

    def d_dma(self, v0):
        a = self.a
        a(f"s_and_b32 s16, s{S_P0}, 15")
        a("s_cmp_ge_u32 s16, 8")
        a("s_cbranch_scc1 L_dd_skip")
        a(f"s_lshr_b32 s17, s{S_P0}, 4")
        self.mk_srd(SRD_B, S_WO, 4 << 20)
        a("s_lshl_b32 s31, s17, 19")
        a(f"s_lshl_b32 s52, s{S_WAVE}, 16")
        a("s_add_u32 s31, s31, s52")
        a("s_lshl_b32 s52, s16, 7")
        a("s_add_u32 s31, s31, s52")
        a(f"v_lshrrev_b32 v{v0}, 3, v1")
        a(f"v_lshlrev_b32 v{v0}, 10, v{v0}")
        a(f"v_and_b32 v{v0+1}, 7, v1")
        a(f"v_lshl_add_u32 v{v0}, v{v0+1}, 4, v{v0}")
        a(f"v_bfe_u32 v{v0+1}, v1, 4, 1")
        a(f"v_lshlrev_b32 v{v0+1}, 5, v{v0+1}")
        a(f"v_xor_b32 v{v0}, v{v0}, v{v0+1}")
        a(f"v_xor_b32 v{v0+1}, 64, v{v0}")
        a(f"s_lshl_b32 s52, s{S_WAVE}, 13")
        a(f"s_add_u32 s52, s52, {ROLEB}")
        for k in range(8):
            a(f"s_add_u32 m0, s52, {1024*k}")
            a("s_nop 0")
            a(f"buffer_load_dwordx4 v{v0+(k>>2)}, {srd(SRD_B)}, s31 offen nt lds")
            a("s_addk_i32 s31, 8192")
        a.label("L_dd_skip")
    def e_dma(self, v0, up):
        a = self.a
        if not up:
            a("s_cmp_lt_u32 s16, 8")
            a("s_cbranch_scc1 L_ed_skip")
            a("s_cmp_eq_u32 s16, 15")
            a("s_cbranch_scc1 L_ed_skip")
        a(f"s_and_b32 s16, s{S_P0}, 15")
        a(f"s_lshr_b32 s17, s{S_P0}, 4")
        self.mk_srd(SRD_B, S_WU if up else S_WG, 512 * 3584)
        a("s_mul_i32 s17, s17, 7")
        a("s_add_u32 s17, s17, s16")
        a("s_sub_u32 s17, s17, 8")
        a(f"s_mul_i32 s31, s{S_WAVE}, {64*3584}")
        a("s_lshl_b32 s52, s17, 6")
        a("s_add_u32 s31, s31, s52")
        a(f"v_lshrrev_b32 v{v0}, 2, v1")
        a(f"v_mul_u32_u24 v{v0}, 3584, v{v0}")
        a(f"v_and_b32 v{v0+1}, 3, v1")
        a(f"v_lshl_add_u32 v{v0}, v{v0+1}, 4, v{v0}")
        a(f"v_xor_b32 v{v0+1}, 32, v{v0}")
        a(f"s_lshl_b32 s52, s{S_WAVE}, 12")
        a(f"s_add_u32 s52, s52, {ROLEB + 32768*up}")
        if up: a("s_barrier")
        for k in range(4):
            a(f"s_add_u32 m0, s52, {1024*k}")
            a("s_nop 0")
            a(f"buffer_load_dwordx4 v{v0+((k>>1)&1)}, {srd(SRD_B)}, s31 offen nt lds")
            a(f"s_add_u32 s31, s31, {16*3584}")
        if not up: a.label("L_ed_skip")

    def w32_setup(self, rowbytes, v0, v1, vt0, vt1):
        a = self.a
        a(f"v_lshrrev_b32 v{v0}, 2, v1")
        a(f"v_mul_u32_u24 v{v0}, {rowbytes}, v{v0}")
        a(f"v_and_b32 v{v1}, 3, v1")
        a(f"v_lshl_add_u32 v{v0}, v{v1}, 4, v{v0}")
        a(f"v_xor_b32 v{v1}, 32, v{v0}")
        assert rowbytes % 64 == 0
        a(f"v_bfe_u32 v{vt0}, v1, 2, 2")
        a(f"v_lshl_add_u32 v{vt0}, v2, 5, v{vt0}")
        a(f"v_lshlrev_b32 v{vt0}, 6, v{vt0}")
        a(f"v_and_b32 v{vt1}, 3, v1")
        a(f"v_lshl_add_u32 v{vt0}, v{vt1}, 3, v{vt0}")
        a(f"v_and_b32 v{vt1}, 1, v2")
        a(f"v_lshl_add_u32 v{vt0}, v{vt1}, 5, v{vt0}")
        a(f"v_xor_b32 v{vt1}, 32, v{vt0}")
    def w32_dma(self, srdn, s_src, s_lds, rowbytes, v0, v1, nrows=128):
        a = self.a
        for n in range(nrows // 16):
            a(f"s_add_u32 m0, s{s_lds}, {n*1024}")
            a(f"s_add_u32 s{S_T7}, s{s_src}, {n*16*rowbytes}")
            a(f"buffer_load_dwordx4 v{v1 if (n>>1)&1 else v0}, {srd(srdn)}, s{S_T7} offen nt lds")
    def w32_read(self, WT, vt0, vt1, fmt, ldsoff=0):
        for ks in range(4):
            for t in range(2):
                for aa in range(2):
                    A = (16 * aa + 4 * ks) if fmt == "Q" else (8 * ks + 4 * aa)
                    self.a(f"ds_read_b64_tr_b16 {vr(WT+8*ks+4*t+2*aa,2)}, v{vt1 if t else vt0} offset:{ldsoff + A*64}")
    def bcast_frags(self, BF, F):
        for ks in range(4):
            for r in range(4):
                self.a(f"v_mov_b32_dpp v{BF+4*ks+r}, v{F+r} quad_perm:[{ks},{ks},{ks},{ks}] row_mask:0xf bank_mask:0xf")
    def frag_cvt(self, F, g0, g1):
        a = self.a
        a(f"v_cvt_pk_bf16_f32 v{F}, v{g0}, v{g0+1}")
        a(f"v_cvt_pk_bf16_f32 v{F+1}, v{g0+2}, v{g0+3}")
        a(f"v_cvt_pk_bf16_f32 v{F+2}, v{g1}, v{g1+1}")
        a(f"v_cvt_pk_bf16_f32 v{F+3}, v{g1+2}, v{g1+3}")
    def part_addr(self, vw, vrd, base):
        a = self.a
        a(f"v_lshrrev_b32 v{vw}, 2, v3")
        a(f"v_lshlrev_b32 v{vw}, 6, v{vw}")
        a(f"v_lshl_add_u32 v{vw}, v2, 4, v{vw}")
        a(f"s_lshl_b32 s{S_T7}, s{S_WAVE}, 9")
        a(f"s_add_u32 s{S_T7}, s{S_T7}, {base}")
        a(f"v_add_u32 v{vw}, s{S_T7}, v{vw}")
        a(f"v_lshrrev_b32 v{vrd}, 5, v1")
        a(f"v_lshlrev_b32 v{vrd}, 7, v{vrd}")
        a(f"v_and_b32 v4, 31, v1")
        a(f"v_add_u32 v{vrd}, v{vrd}, v4")
        a(f"v_lshlrev_b32 v{vrd}, 4, v{vrd}")
        a(f"v_add_u32 v{vrd}, {base}, v{vrd}")
    def reduce4(self, R, vrd):
        a = self.a
        for aa in range(4): a(f"ds_read_b128 {vr(R+4*aa,4)}, v{vrd} offset:{512*aa}")
        a("s_waitcnt lgkmcnt(0)")
        self.pk_tree(R, 16, 4)

    def build_F(self):
        a = self.a
        S_H = S_P1
        G, R = 40, 48
        FB = 32768
        a("v_lshrrev_b32 v30, 4, v0")
        a("v_lshlrev_b32 v30, 13, v30")
        a("v_lshl_add_u32 v30, v3, 4, v30")
        a(f"s_lshl_b32 s{S_T0}, s{S_H}, 8")
        a(f"s_add_u32 s{S_T0}, s{S_T0}, {hex(H6)}")
        a(f"s_add_u32 s{S_T1}, s{S_T0}, {32*8192}")
        a("v_lshlrev_b32 v31, 4, v0")
        a(f"v_add_u32 v31, {FB}, v31")
        self.mk_srd(SRD_OUT, S_OUT, 4096)
        a("v_lshrrev_b32 v32, 2, v3")
        a("v_and_b32 v33, 3, v3")
        a("v_lshlrev_b32 v34, 10, v32")
        a("v_lshl_add_u32 v34, v33, 5, v34")
        a(f"s_lshr_b32 s{S_T2}, s{S_H}, 2")
        a(f"s_and_b32 s{S_T3}, s{S_H}, 3")
        a(f"s_lshl_b32 s{S_T4}, s{S_T2}, 7")
        a(f"s_lshl_b32 s{S_T5}, s{S_T3}, 3")
        a(f"s_add_u32 s{S_T4}, s{S_T4}, s{S_T5}")
        a(f"s_cmp_lg_u32 s{S_WAVE}, 0")
        a("s_cbranch_scc1 L_F_poll")
        a(f"buffer_load_dwordx2 v[36:37], v34, {srd(SRD_X)}, s{S_T4} offen")
        a("v_lshlrev_b32 v35, 13, v2")
        a("v_lshl_add_u32 v35, v32, 6, v35")
        a("v_lshl_add_u32 v35, v33, 8, v35")
        a(f"s_lshl_b32 s{S_T2}, s{S_T2}, 10")
        a(f"s_lshl_b32 s{S_T3}, s{S_T3}, 4")
        a(f"s_add_u32 s{S_T2}, s{S_T2}, s{S_T3}")
        a(f"s_add_u32 s{S_T2}, s{S_T2}, {hex(H5)}")
        a("v_lshlrev_b32 v39, 4, v1")
        a(f"v_add_u32 v39, {FB}, v39")
        a(f"s_add_u32 s{S_T3}, s{S_T2}, 32768")
        self.sweep([(84, 35, f"s{S_T2}", 0), (92, 35, f"s{S_T3}", 0)], "f24", 24, 25, 26)
        self.stamp(7)
        a("v_pk_add_f32 v[84:85], v[84:85], v[92:93]")
        a("v_pk_add_f32 v[86:87], v[86:87], v[94:95]")
        self.unpack(88, 36); self.unpack(90, 37)
        self.exec_mask(0xffff, 0)
        a("v_pk_add_f32 v[84:85], v[84:85], v[88:89]")
        a("v_pk_add_f32 v[86:87], v[86:87], v[90:91]")
        self.exec_all()
        a.label("L_F_poll")
        a(f"s_cmp_ge_u32 s{S_WAVE}, 6")
        a("s_cbranch_scc1 L_F_one")
        self.sweep([(G, 30, f"s{S_T0}", 0), (G + 4, 30, f"s{S_T1}", 0)], "f24", 24, 25, 26)
        a(f"v_pk_add_f32 {vr(G,2)}, {vr(G,2)}, {vr(G+4,2)}")
        a(f"v_pk_add_f32 {vr(G+2,2)}, {vr(G+2,2)}, {vr(G+6,2)}")
        a("s_branch L_F_wr")
        a.label("L_F_one")
        self.sweep([(G, 30, f"s{S_T0}", 0)], "f24", 24, 25, 26)
        a.label("L_F_wr")
        self.stamp(9)
        a(f"ds_write_b128 v31, {vr(G,4)}")
        a("s_waitcnt lgkmcnt(0)")
        a("s_barrier")
        a(f"s_cmp_lg_u32 s{S_WAVE}, 0")
        a("s_cbranch_scc1 L_F_done")
        for k in range(8): a(f"ds_read_b128 {vr(R+4*k,4)}, v39 offset:{1024*k}")
        a("s_waitcnt lgkmcnt(0)")
        self.pk_tree(R, 32, 4)
        a(f"v_pk_add_f32 {vr(R,2)}, {vr(R,2)}, v[84:85]")
        a(f"v_pk_add_f32 {vr(R+2,2)}, {vr(R+2,2)}, v[86:87]")
        self.cross_sum([R, R + 1, R + 2, R + 3], R + 4, 32)
        self.cross_sum([R, R + 1, R + 2, R + 3], R + 4, 16)
        a(f"v_cvt_pk_bf16_f32 v{R+8}, v{R}, v{R+1}")
        a(f"v_cvt_pk_bf16_f32 v{R+9}, v{R+2}, v{R+3}")
        self.exec_mask(0xffff, 0)
        a(f"buffer_store_dwordx2 {vr(R+8,2)}, v34, {srd(SRD_OUT)}, s{S_T4} offen")
        a(f"s_cmp_lg_u32 s{S_H}, 0")
        a("s_cbranch_scc1 L_F_done")
        a("s_mov_b64 exec, 1")
        a(f"buffer_store_dword v5, v6, {srd(SRD_WS)}, 0 offen sc1")
        a.label("L_F_done")
        self.exec_all()

    def build_T(self):
        a = self.a
        S_B, S_S = S_P1, S_P2
        QB = 131072
        MX, LB, PB = QB, QB + 1024, QB + 2048
        CNT = QB + 12288
        a(f"s_lshr_b32 s{S_B}, s{S_P0}, 5")
        a(f"s_and_b32 s{S_S}, s{S_P0}, 31")
        a("v_and_b32 v44, 31, v1")
        a("v_lshrrev_b32 v45, 5, v1")
        a(f"s_cmp_ge_u32 s{S_WAVE}, 4")
        a("s_cbranch_scc1 L_T_pvw")
        self.mk_srd(SRD_A, S_CKV, 16 << 20)
        a("v_lshlrev_b32 v7, 2, v2")
        a("v_xor_b32 v7, v7, v3")
        a("v_lshlrev_b32 v7, 4, v7")
        a("v_lshl_add_u32 v8, v2, 10, v7")
        br = [0, 2, 1, 3]
        for e in range(1, 4): a(f"v_xor_b32 v{8+e}, {16*br[e]}, v8")
        a(f"s_lshl_b32 s{S_T0}, s{S_P0}, 17")
        a(f"s_lshl_b32 s{S_T1}, s{S_WAVE}, 15")
        a(f"s_add_u32 s{S_T0}, s{S_T0}, s{S_T1}")
        a(f"s_lshl_b32 s{S_T1}, s{S_WAVE}, 13")
        def dma(q):
            for e in range(8):
                a(f"s_add_u32 m0, s{S_T1}, {q*32768 + e*1024}")
                a(f"s_add_u32 s{S_T2}, s{S_T0}, {e*4096 + q*256}")
                a(f"buffer_load_dwordx4 v{8+(e&3)}, {srd(SRD_A)}, s{S_T2} offen nt lds")
        self.load_epoch()
        if not self.t_delay: dma(0)
        a(f"s_mov_b32 s{S_T7}, 0x3e0293ee")
        a("v_lshlrev_b32 v41, 5, v44")
        a(f"v_add_u32 v41, {MX}, v41")
        a("v_and_b32 v46, 3, v1")
        a("v_lshlrev_b32 v46, 2, v46")
        a("v_bfe_u32 v47, v1, 2, 1")
        a("v_lshl_add_u32 v46, v47, 1, v46")
        a("v_bfe_u32 v47, v1, 3, 1")
        a("v_add_u32 v46, v46, v47")
        a("v_xor_b32 v46, v46, v45")
        a("v_lshlrev_b32 v46, 4, v46")
        a("v_lshl_add_u32 v46, v44, 8, v46")
        RC, RQ, RC2 = 48, 56, 208
        for t in range(8): a(f"v_xor_b32 v{RQ+t}, {32*t}, v46")
        for t in range(8):
            a(f"v_add_u32 v{RC+t}, s{S_T1}, v{RQ+t}")
            a(f"v_add_u32 v{RQ+t}, {QB}, v{RQ+t}")
            a(f"v_add_u32 v{RC2+t}, 0x10000, v{RC+t}")
        a("v_lshl_add_u32 v42, v45, 2, v41")
        a(f"s_lshl_b32 s{S_T6}, s{S_WAVE}, 3")
        a(f"v_add_u32 v42, s{S_T6}, v42")
        a("v_lshlrev_b32 v24, 4, v1")
        a(f"s_lshl_b32 s{S_T6}, s{S_WAVE}, 11")
        a(f"s_add_u32 s{S_T6}, s{S_T6}, {PB}")
        a(f"v_add_u32 v24, s{S_T6}, v24")
        a(f"s_waitcnt vmcnt({self.t_first})")
        for dd in range(1, self.t_delay):
            a(f"s_lshl_b32 s{S_T2}, s{S_B}, 20")
            a(f"s_add_u32 s{S_T2}, s{S_T2}, {hex(H3 + 0x40000*dd)}")
            a(f"buffer_load_dword v40, v6, {srd(SRD_WS)}, s{S_T2} offen nt")
            a("s_waitcnt vmcnt(0)")
        self.stamp(1)
        if self.t_delay: dma(0)
        dma(1); dma(2)
        a(f"s_waitcnt vmcnt({min(self.t_sweep, 8)})")
        self.tag_ready()
        a("s_barrier")
        a("s_barrier")
        dma(3)
        self.stamp(2)
        a("s_barrier")
        self.stamp(3)
        SC = 64
        FA, FB, FQ3 = 80, 112, 144
        D = 6
        def rd(n):
            q, t = n >> 3, n & 7
            if n == 16: a("s_waitcnt vmcnt(8)")
            rc = RC if q < 2 else RC2
            a(f"ds_read_b128 {vr(FA+4*t,4)}, v{rc+t} offset:{32768*(q&1)}")
            a(f"ds_read_b128 {vr(FB+4*t,4)}, v{RQ+t} offset:{8192*q}")
        for n in range(D): rd(n)
        for n in range(24):
            if n + D < 24:
                rd(n + D); pend = 2 * D
            else:
                k = n + D - 24
                for t in ((k,) if k < 4 else (2 * k - 4, 2 * k - 3)):
                    a(f"ds_read_b128 {vr(FQ3+4*t,4)}, v{RQ+t} offset:{8192*3}")
                nq = (k + 1) if k < 4 else (2 * k - 2)
                pend = 2 * (23 - n) + nq
            a(f"s_waitcnt lgkmcnt({min(pend,15)})")
            if n == 16: a("s_barrier")
            c = "0" if n == 0 else vr(SC, 16)
            a(f"v_mfma_f32_32x32x16_bf16 {vr(SC,16)}, {vr(FA+4*(n&7),4)}, {vr(FB+4*(n&7),4)}, {c}")
        a("s_waitcnt vmcnt(0)")
        self.stamp(8)
        for t in range(8): a(f"ds_read_b128 {vr(FB+4*t,4)}, v{RC2+t} offset:32768")
        a("s_barrier")
        for t in range(8):
            a(f"s_waitcnt lgkmcnt({7-t})")
            a(f"v_mfma_f32_32x32x16_bf16 {vr(SC,16)}, {vr(FB+4*t,4)}, {vr(FQ3+4*t,4)}, {vr(SC,16)}")
        self.stamp(9)
        a(f"v_max3_f32 v40, v{SC}, v{SC+1}, v{SC+2}")
        a(f"v_max3_f32 v43, v{SC+3}, v{SC+4}, v{SC+5}")
        a(f"v_max3_f32 v40, v40, v{SC+6}, v{SC+7}")
        a(f"v_max3_f32 v43, v43, v{SC+8}, v{SC+9}")
        a(f"v_max3_f32 v40, v40, v{SC+10}, v{SC+11}")
        a(f"v_max3_f32 v43, v43, v{SC+12}, v{SC+13}")
        a(f"v_max3_f32 v40, v40, v{SC+14}, v{SC+15}")
        a("v_max_f32 v40, v40, v43")
        a("ds_write_b32 v42, v40")
        a(f"ds_write_b32 v41, v6 offset:{CNT-MX}")
        a("s_waitcnt lgkmcnt(0)")
        a("s_barrier")
        a("ds_read_b128 v[16:19], v41")
        a("ds_read_b128 v[20:23], v41 offset:16")
        a("s_waitcnt lgkmcnt(0)")
        a("v_max3_f32 v40, v16, v17, v18")
        a("v_max3_f32 v43, v19, v20, v21")
        a("v_max3_f32 v40, v40, v22, v23")
        a("v_max_f32 v40, v40, v43")
        a(f"v_mul_f32 v52, s{S_T7}, v40")
        for i in range(16): a(f"v_fma_f32 v{SC+i}, v{SC+i}, s{S_T7}, -v52")
        for i in range(16): a(f"v_exp_f32 v{SC+i}, v{SC+i}")
        for i in range(8): a(f"v_cvt_pk_bf16_f32 v{16+i}, v{SC+2*i}, v{SC+2*i+1}")
        a("ds_write_b128 v24, v[16:19]")
        a("ds_write_b128 v24, v[20:23] offset:1024")
        a("s_waitcnt lgkmcnt(0)")
        a("s_barrier")
        self.stamp(4)
        self.pk_tree(SC, 16, 2)
        a(f"v_add_f32 v43, v{SC}, v{SC+1}")
        a(f"ds_write_b32 v42, v43 offset:{LB-MX}")
        a("s_waitcnt lgkmcnt(0)")
        a("s_barrier")
        a("s_branch L_T_roles")
        a.label("L_T_pvw")
        self.load_epoch()
        G = 64
        a("v_and_b32 v13, 255, v0")
        a("v_lshlrev_b32 v12, 4, v13")
        a(f"s_lshl_b32 s{S_T5}, s{S_P0}, 12")
        for k, vv in enumerate((25, 26, 27, 12)):
            a(f"s_and_b32 s{S_T6}, s{S_T5}, 0x3000")
            a(f"v_add_u32 v{vv}, s{S_T6}, v12")
            a(f"s_addk_i32 s{S_T5}, 4096")
        a(f"s_mul_i32 s{S_T0}, s{S_B}, 49152")
        a(f"s_add_u32 s{S_T0}, s{S_T0}, {hex(H2)}")
        offs = [S_T0, S_T1, S_T2]
        for p in range(1, 3): a(f"s_add_u32 s{offs[p]}, s{S_T0}, {p*16384}")
        a("v_lshrrev_b32 v16, 5, v13")
        a("v_and_b32 v14, 3, v16")
        a("v_lshlrev_b32 v14, 2, v14")
        a("v_lshrrev_b32 v15, 2, v16")
        a("v_lshl_add_u32 v14, v15, 1, v14")
        a("v_and_b32 v15, 7, v13")
        a("v_lshlrev_b32 v15, 1, v15")
        a("v_xor_b32 v14, v14, v15")
        a("v_lshlrev_b32 v14, 4, v14")
        a("v_lshl_add_u32 v14, v16, 8, v14")
        a("v_bfe_u32 v15, v13, 3, 2")
        a("v_lshl_add_u32 v14, v15, 13, v14")
        a(f"v_add_u32 v14, {QB}, v14")
        a(f"s_mov_b32 s{S_T5}, s{S_P0}")
        for k in range(4):
            a(f"s_and_b32 s{S_T6}, s{S_T5}, 3")
            a(f"s_lshl_b32 s{S_T6}, s{S_T6}, 11")
            a(f"v_add_u32 v{34+k}, s{S_T6}, v14")
            a(f"s_and_b32 s{S_T6}, s{S_T5}, 1")
            a(f"s_lshl_b32 s{S_T6}, s{S_T6}, 4")
            a(f"v_xor_b32 v{34+k}, s{S_T6}, v{34+k}")
            a(f"s_add_u32 s{S_T5}, s{S_T5}, 1")
        TA = 16
        a("v_bfe_u32 v30, v1, 2, 2")
        a("v_bfe_u32 v31, v1, 1, 1")
        a("v_bfe_u32 v32, v1, 4, 1")
        a("v_lshl_add_u32 v31, v32, 1, v31")
        a("v_lshl_add_u32 v31, v30, 2, v31")
        a("v_lshlrev_b32 v31, 4, v31")
        a("v_and_b32 v33, 1, v1")
        a("v_lshl_add_u32 v31, v33, 3, v31")
        a("v_lshl_add_u32 v33, v32, 2, v30")
        a("v_lshl_add_u32 v33, v45, 4, v33")
        a("v_lshl_add_u32 v31, v33, 8, v31")
        a(f"s_and_b32 s{S_T6}, s{S_WAVE}, 3")
        a(f"s_lshl_b32 s{S_T5}, s{S_T6}, 6")
        a(f"v_xor_b32 v31, s{S_T5}, v31")
        for i1 in range(2):
            for aa in range(2):
                a(f"v_xor_b32 v{TA+2*i1+aa}, {32*i1 + 16*aa}, v31")
                a(f"v_add_u32 v{TA+4+2*i1+aa}, 0x10000, v{TA+2*i1+aa}")
        a("v_lshlrev_b32 v24, 10, v45")
        a("v_lshl_add_u32 v24, v32, 9, v24")
        a("v_lshl_add_u32 v24, v3, 4, v24")
        a(f"v_add_u32 v24, {PB}, v24")
        a("v_lshlrev_b32 v33, 17, v2")
        a("v_lshl_add_u32 v33, v3, 4, v33")
        a(f"s_lshl_b32 s{S_T3}, s{S_B}, 20")
        a(f"s_lshl_b32 s{S_T5}, s{S_S}, 10")
        a(f"s_add_u32 s{S_T3}, s{S_T3}, s{S_T5}")
        a(f"s_lshl_b32 s{S_T5}, s{S_T6}, 8")
        a(f"s_add_u32 s{S_T3}, s{S_T3}, s{S_T5}")
        a(f"s_add_u32 s{S_T3}, s{S_T3}, {hex(H3)}")
        a("s_waitcnt vmcnt(0)")
        self.tag_ready()
        a("s_barrier")
        self.stamp(1)
        loads = []
        for rep in range(4):
            for p in range(3): loads.append((G + 12 * rep + 4 * p, (25, 26, 27, 12)[rep], f"s{offs[p]}", 0))
        self.sweep(loads, "t32", 40, 42, 43, mid=lambda: a("s_barrier"))
        self.stamp(2)
        for rep in range(4):
            b = G + 12 * rep
            a(f"v_mov_b32 v{b+3}, v{b+8}")
            a(f"v_mov_b32 v{b+7}, v{b+9}")
            a(f"v_xor_b32 v15, 16, v{34+rep}")
            a(f"ds_write_b128 v{34+rep}, {vr(b,4)}")
            a(f"ds_write_b128 v15, {vr(b+4,4)}")
        a("s_waitcnt lgkmcnt(0)")
        a("s_barrier")
        self.stamp(3)
        BFR, PF, OA, OUT = 128, 64, 96, 48
        def rdplane(q):
            for i1 in range(2):
                for kt in range(4):
                    for aa in range(2):
                        i = 2 * q + i1
                        a(f"ds_read_b64_tr_b16 {vr(BFR+16*i+4*kt+2*aa,2)}, v{TA+(4 if q>=2 else 0)+2*i1+aa} offset:{32768*(q&1) + 8192*kt + 2048*aa}")
        rdplane(0); rdplane(1)
        a("s_barrier")
        rdplane(2)
        a("s_waitcnt lgkmcnt(0)")
        a("s_barrier")
        rdplane(3)
        a("s_barrier")
        a("s_waitcnt lgkmcnt(0)")
        a("s_barrier")
        self.stamp(4)
        for hh in range(2):
            for kt in range(4): a(f"ds_read_b128 {vr(PF+16*hh+4*kt,4)}, v24 offset:{2048*kt+256*hh}")
        for hh in range(2):
            acc = OA if hh == 0 else 16
            for kt in range(4):
                if hh == 0: a(f"s_waitcnt lgkmcnt({7-kt})")
                elif kt == 0: a("s_waitcnt lgkmcnt(0)")
                for i in range(8):
                    c = "0" if kt == 0 else vr(acc + 4 * i, 4)
                    a(f"v_mfma_f32_16x16x32_bf16 {vr(acc+4*i,4)}, {vr(PF+16*hh+4*kt,4)}, {vr(BFR+16*i+4*kt,4)}, {c}")
                    if hh == 1 and kt < 4 and i == 7:
                        r = kt
                        for u in range(4): a(f"v_cvt_pk_bf16_f32 v{OUT+4*r+u}, v{OA+8*u+r}, v{OA+8*u+4+r}")
                        a(f"buffer_store_dwordx4 {vr(OUT+4*r,4)}, v12, {srd(SRD_WS)}, s{S_T3} offen sc1")
                        a(f"s_add_u32 s{S_T3}, s{S_T3}, {32768 if r < 3 else 13*32768}")
            if hh == 0:
                a("v_mov_b32 v12, v33")
                a("s_barrier")
        for r in range(4):
            for u in range(4): a(f"v_cvt_pk_bf16_f32 v{OA+4*r+u}, v{16+8*u+r}, v{16+8*u+4+r}")
            a(f"buffer_store_dwordx4 {vr(OA+4*r,4)}, v12, {srd(SRD_WS)}, s{S_T3} offen sc1")
            if r < 3: a(f"s_add_u32 s{S_T3}, s{S_T3}, 32768")
        self.stamp(5)
        a("v_and_b32 v44, 31, v1")
        a("v_lshlrev_b32 v41, 5, v44")
        a(f"v_add_u32 v41, {MX}, v41")
        a("ds_read_b128 v[64:67], v41")
        a("ds_read_b128 v[68:71], v41 offset:16")
        a(f"ds_read_b128 v[72:75], v41 offset:{LB-MX}")
        a(f"ds_read_b128 v[76:79], v41 offset:{LB-MX+16}")
        a("v_lshlrev_b32 v44, 4, v44")
        a(f"s_lshl_b32 s{S_T5}, s{S_P0}, 9")
        a(f"s_add_u32 s{S_T5}, s{S_T5}, {hex(FL3)}")
        a(f"v_mov_b32 v42, {CNT}")
        a("v_mov_b32 v43, 1")
        a("s_waitcnt lgkmcnt(0)")
        a("v_max3_f32 v80, v64, v65, v66")
        a("v_max3_f32 v81, v67, v68, v69")
        a("v_max3_f32 v80, v80, v70, v71")
        a("v_max_f32 v80, v80, v81")
        a("v_mul_f32 v80, 0x3e0293ee, v80")
        self.pk_tree(72, 8, 2)
        a("v_add_f32 v81, v72, v73")
        a("v_mov_b32 v82, 0")
        a("v_mov_b32 v83, v5")
        a("s_mov_b64 exec, 1")
        a("s_waitcnt vmcnt(0)")
        a("ds_add_rtn_u32 v43, v42, v43")
        a("s_waitcnt lgkmcnt(0)")
        a(f"v_readfirstlane_b32 s{S_T0}, v43")
        self.exec_all()
        a(f"s_cmp_lg_u32 s{S_T0}, 3")
        a("s_cbranch_scc1 L_T_noflag")
        a("s_mov_b32 exec_hi, 0")
        a(f"buffer_store_dwordx4 v[80:83], v44, {srd(SRD_WS)}, s{S_T5} offen sc1")
        self.exec_all()
        self.stamp(10)
        a.label("L_T_noflag")
        a.label("L_T_roles")
        self.l2_prefetch(128)
        a(f"s_and_b32 s{S_T0}, s{S_P0}, 3")
        a(f"s_cmp_lg_u32 s{S_T0}, 0")
        a("s_cbranch_scc1 L_T_end")
        a(f"s_lshr_b32 s{S_P1}, s{S_P0}, 2")
        self.build_F()
        a.label("L_T_end")
        self.finish()

    def build_D(self):
        a = self.a
        WT, G, F, BF, ACC, R = 8, 72, 88, 96, 112, 8
        PBASE = RPB
        a(f"s_cmp_lt_u32 s{S_WAVE}, 4")
        a("s_cbranch_scc1 L_D_red")
        a(f"s_and_b32 s{S_T5}, s{S_WAVE}, 3")
        a("v_bfe_u32 v130, v1, 2, 2")
        a("v_lshl_add_u32 v131, v2, 5, v130")
        a("v_lshlrev_b32 v131, 7, v131")
        a("v_and_b32 v132, 3, v1")
        a("v_lshl_add_u32 v131, v132, 3, v131")
        a("v_lshrrev_b32 v130, 1, v130")
        a("v_lshl_add_u32 v131, v130, 5, v131")
        a("v_and_b32 v130, 1, v2")
        a("v_lshl_add_u32 v131, v130, 6, v131")
        a(f"s_lshl_b32 s{S_T4}, s{S_T5}, 14")
        a(f"s_add_u32 s{S_T4}, s{S_T4}, {ROLEB}")
        a(f"v_add_u32 v131, s{S_T4}, v131")
        for t in range(4): a(f"v_xor_b32 v{132+t}, {32*t}, v131")
        for ks in range(4):
            for t in range(4):
                for aa in range(2):
                    a(f"ds_read_b64_tr_b16 {vr(WT+16*ks+4*t+2*aa,2)}, v{132+t} offset:{(8*ks+4*aa)*128}")
        a("v_lshrrev_b32 v136, 2, v3")
        a("v_lshlrev_b32 v136, 6, v136")
        a("v_lshl_add_u32 v136, v2, 4, v136")
        a(f"s_lshl_b32 s{S_T0}, s{S_T5}, 10")
        a(f"s_add_u32 s{S_T0}, s{S_T0}, {PBASE}")
        a(f"v_add_u32 v136, s{S_T0}, v136")
        a("v_lshrrev_b32 v137, 3, v3")
        a("v_lshlrev_b32 v137, 10, v137")
        a("v_lshl_add_u32 v137, v2, 7, v137")
        a("v_and_b32 v138, 7, v3")
        a("v_lshl_add_u32 v137, v138, 4, v137")
        a(f"s_lshr_b32 s{S_T2}, s{S_P0}, 4")
        a(f"s_lshl2_add_u32 s{S_T2}, s{S_T2}, s{S_T5}")
        a(f"s_lshl_b32 s{S_T2}, s{S_T2}, 12")
        a(f"s_add_u32 s{S_T2}, s{S_T2}, {hex(H4)}")
        self.stamp(8)
        self.sweep([(G + 8 * ch + 4 * aa, 137, f"s{S_T2}", 2048 * ch + 512 * aa) for ch in range(2) for aa in range(2)], "f24", 138, 139, 140)
        self.stamp(7)
        self.pk_tree(G, 16, 8)
        self.frag_cvt(F, G, G + 4)
        self.bcast_frags(BF, F)
        a("s_waitcnt lgkmcnt(0)")
        for ks in range(4):
            for t in range(4):
                c = "0" if ks == 0 else vr(ACC + 4 * t, 4)
                a(f"v_mfma_f32_16x16x32_bf16 {vr(ACC+4*t,4)}, {vr(WT+16*ks+4*t,4)}, {vr(BF+4*ks,4)}, {c}")
        self.exec_mask(0x11111111)
        for t in range(4): a(f"ds_write_b128 v136, {vr(ACC+4*t,4)} offset:{256*t}")
        self.exec_all()
        a("s_waitcnt lgkmcnt(0)")
        a("s_barrier")
        a("s_branch L_D_done")
        a.label("L_D_red")
        a("v_lshlrev_b32 v30, 4, v1")
        a(f"v_add_u32 v31, {PBASE}, v30")
        a(f"s_lshr_b32 s{S_T3}, s{S_P0}, 4")
        a(f"s_lshl_b32 s{S_T3}, s{S_T3}, 13")
        a(f"s_lshl_b32 s{S_T1}, s{S_T0}, 10")
        a(f"s_add_u32 s{S_T3}, s{S_T3}, s{S_T1}")
        a(f"s_add_u32 s{S_T3}, s{S_T3}, {hex(H5)}")
        a("s_barrier")
        a(f"s_cmp_lg_u32 s{S_WAVE}, 2")
        a("s_cbranch_scc1 L_D_done")
        for aa in range(4): a(f"ds_read_b128 {vr(R+4*aa,4)}, v31 offset:{1024*aa}")
        a("s_waitcnt lgkmcnt(0)")
        self.pk_tree(R, 16, 4)
        self.tag24(R + 8, R)
        a(f"buffer_store_dwordx4 {vr(R+8,4)}, v30, {srd(SRD_WS)}, s{S_T3} offen sc1")
        self.stamp(8)
        a.label("L_D_done")

    def build_E(self):
        a = self.a
        S_FS = S_P1
        WT, G, F, BF, ACC, XS, ONE, HS = 8, 72, 136, 140, 176, 244, 156, 200
        PBASE = RPB
        SBASE = PBASE + 4096
        CBASE = PBASE + 8192
        ACTB = PBASE + 12288
        a(f"s_lshr_b32 s{S_T1}, s{S_P0}, 4")
        a(f"s_mul_i32 s{S_T1}, s{S_T1}, 7")
        a(f"s_add_u32 s{S_T1}, s{S_T1}, s{S_T0}")
        a(f"s_sub_u32 s{S_FS}, s{S_T1}, 8")
        self.e_dma(160, 1)
        self.mk_srd(SRD_OUT, S_WD, 1792 * 1024)
        a("v_lshlrev_b32 v7, 4, v1")
        a(f"s_lshl_b32 s31, s{S_FS}, 15")
        a(f"s_lshl_b32 s{S_T4}, s{S_WAVE}, 12")
        a(f"s_add_u32 s31, s31, s{S_T4}")
        a(f"s_add_u32 s{S_T4}, s{S_T4}, {ROLEB+65536}")
        for k in range(4):
            a(f"s_add_u32 m0, s{S_T4}, {1024*k}")
            a("s_nop 0")
            a(f"buffer_load_dwordx4 v7, {srd(SRD_OUT)}, s31 offen nt lds")
            a("s_addk_i32 s31, 1024")
        self.w32_setup(3584, 160, 161, 162, 163)
        a(f"s_lshl_b32 s{S_T4}, s{S_WAVE}, 13")
        a(f"s_add_u32 s{S_T4}, s{S_T4}, {ROLEB}")
        DW, DA = 224, 240
        a("v_bfe_u32 v175, v1, 2, 2")
        a("v_lshl_add_u32 v175, v2, 2, v175")
        a("v_lshlrev_b32 v175, 10, v175")
        a("v_and_b32 v254, 3, v1")
        a("v_lshl_add_u32 v175, v254, 3, v175")
        a(f"s_lshl_b32 s{S_T0}, s{S_WAVE}, 7")
        a(f"s_add_u32 s{S_T0}, s{S_T0}, {ROLEB+65536}")
        a(f"v_add_u32 v175, s{S_T0}, v175")
        a("v_lshrrev_b32 v254, 2, v3")
        a("v_lshlrev_b32 v254, 6, v254")
        a("v_lshl_add_u32 v254, v2, 4, v254")
        a(f"v_add_u32 v254, {ACTB}, v254")
        a("v_lshlrev_b32 v255, 4, v0")
        a(f"s_lshl_b32 s{S_P3}, s{S_FS}, 13")
        a(f"s_add_u32 s{S_P3}, s{S_P3}, {hex(H6)}")
        def down_read():
            for t in range(4):
                for aa in range(2):
                    a(f"ds_read_b64_tr_b16 {vr(DW+4*t+2*aa,2)}, v175 offset:{32*t + 16384*aa}")
        self.part_addr(164, 165, PBASE)
        a(f"s_cmp_ge_u32 s{S_WAVE}, 4")
        a("s_cbranch_scc1 L_E_red")
        a(f"v_add_u32 v162, s{S_T4}, v162")
        a(f"v_add_u32 v163, s{S_T4}, v163")
        a("v_lshrrev_b32 v166, 2, v3")
        a("v_lshlrev_b32 v168, 4, v3")
        a("v_lshl_add_u32 v168, v2, 9, v168")
        a(f"s_lshl_b32 s{S_T0}, s{S_WAVE}, 11")
        so = [S_T3, S_T4, S_T5, S_T6, 16, 17, 31, 52]
        a(f"s_add_u32 s{S_T0}, s{S_T0}, {hex(H5)}")
        a(f"s_lshl_b32 s{S_T1}, s{S_P0}, 13")
        for kg in range(8):
            a(f"s_and_b32 s{S_T2}, s{S_T1}, 0xe000")
            a(f"s_add_u32 s{so[kg]}, s{S_T0}, s{S_T2}")
            if kg < 7: a(f"s_addk_i32 s{S_T1}, 8192")
        a("v_lshlrev_b32 v174, 3, v166")
        a(f"s_lshl_b32 s{S_T0}, s{S_WAVE}, 5")
        a(f"s_add_u32 s{S_T0}, s{S_T0}, {SBASE}")
        a(f"v_add_u32 v174, s{S_T0}, v174")
        for i in range(4): a(f"v_mov_b32 v{ONE+i}, 0x3f803f80")
        self.w32_read(WT, 162, 163, "Q")
        a("s_waitcnt vmcnt(4)")
        a("s_barrier")
        self.w32_read(WT + 32, 162, 163, "Q", 32768)
        a("s_waitcnt lgkmcnt(0)")
        for m in range(2):
            for ks in range(4):
                for t in range(2):
                    c = "0" if ks == 0 else vr(ACC + 8 * m + 4 * t, 4)
                    a(f"v_mfma_f32_16x16x32_bf16 {vr(ACC+8*m+4*t,4)}, {vr(WT+32*m+8*ks+4*t,4)}, {vr(ONE,4)}, {c}")
        self.exec_mask(0x11111111)
        for m in range(2):
            for t in range(2): a(f"ds_write_b128 v164, {vr(ACC+8*m+4*t,4)} offset:{CBASE-PBASE+2048*m+256*t}")
        self.exec_all()
        a("s_waitcnt vmcnt(0) lgkmcnt(0)")
        a("s_barrier")
        down_read()
        self.stamp(1)
        def acc_h(i, d):
            t = i & 1
            for j in (0, 2):
                src = XS + 4 * t + j if i < 2 else HS + 4 * t + j
                a(f"v_pk_add_f32 {vr(HS+4*t+j,2)}, {vr(src,2)}, {vr(d+j,2)}")
        self.sweep([(G + 8 * kg + 4 * t, 168, f"s{so[kg]}", 256 * t) for kg in range(8) for t in range(2)], "f24", 171, 172, 173, post=acc_h)
        self.stamp(7)
        self.frag_cvt(F, HS, HS + 4)
        self.bcast_frags(BF, F)
        for ks in range(4):
            for m in range(2):
                for t in range(2):
                    c = "0" if ks == 0 else vr(ACC + 8 * m + 4 * t, 4)
                    a(f"v_mfma_f32_16x16x32_bf16 {vr(ACC+8*m+4*t,4)}, {vr(WT+32*m+8*ks+4*t,4)}, {vr(BF+4*ks,4)}, {c}")
            c = "0" if ks == 0 else vr(ACC + 16, 4)
            a(f"v_mfma_f32_16x16x32_bf16 {vr(ACC+16,4)}, {vr(ONE,4)}, {vr(BF+4*ks,4)}, {c}")
            c = "0" if ks == 0 else vr(ACC + 20, 4)
            a(f"v_mfma_f32_16x16x32_bf16 {vr(ACC+20,4)}, {vr(BF+4*ks,4)}, {vr(BF+4*ks,4)}, {c}")
        self.exec_mask(0x11111111)
        for m in range(2):
            for t in range(2): a(f"ds_write_b128 v164, {vr(ACC+8*m+4*t,4)} offset:{2048*m+256*t}")
        self.exec_mask(0x00100001, 0x10000100)
        a(f"ds_write2_b32 v174, v{ACC+16}, v{ACC+20} offset0:0 offset1:1")
        self.exec_all()
        a("s_waitcnt lgkmcnt(0)")
        a("s_barrier")
        a("s_branch L_E_down")
        a.label("L_E_red")
        R, CS, ST = 8, 24, 40
        a("v_lshlrev_b32 v60, 4, v3")
        a("v_and_b32 v61, 1, v2")
        a("v_lshl_add_u32 v60, v61, 3, v60")
        a(f"v_add_u32 v60, {ACTB}, v60")
        a("v_bfe_u32 v61, v1, 2, 2")
        a("v_lshlrev_b32 v61, 3, v61")
        a(f"v_add_u32 v61, {SBASE}, v61")
        a("s_waitcnt vmcnt(4)")
        a("s_barrier")
        a("s_waitcnt vmcnt(0)")
        a("s_barrier")
        down_read()
        for aa in range(4): a(f"ds_read_b128 {vr(CS+4*aa,4)}, v165 offset:{CBASE-PBASE+512*aa}")
        a("s_waitcnt lgkmcnt(0)")
        self.pk_tree(CS, 16, 4)
        a("s_barrier")
        a(f"s_cmp_lg_u32 s{S_WAVE}, 4")
        a("s_cbranch_scc1 L_E_down")
        for w in range(4): a(f"ds_read_b64 {vr(ST+2*w,2)}, v61 offset:{32*w}")
        for aa in range(4): a(f"ds_read_b128 {vr(R+4*aa,4)}, v165 offset:{512*aa}")
        a("s_waitcnt lgkmcnt(4)")
        self.pk_tree(ST, 8, 2)
        a(f"v_mul_f32 v{ST}, 0x3b000000, v{ST}")
        a(f"v_mul_f32 v{ST+2}, v{ST}, v{ST}")
        a(f"v_mov_b32 v{ST+3}, 0x3b000000")
        a(f"v_fma_f32 v{ST+2}, v{ST+1}, v{ST+3}, -v{ST+2}")
        a(f"v_max_f32 v{ST+2}, 0, v{ST+2}")
        a(f"v_add_f32 v{ST+2}, 0x3727c5ac, v{ST+2}")
        a(f"v_rsq_f32 v{ST+2}, v{ST+2}")
        a("s_waitcnt lgkmcnt(0)")
        self.pk_tree(R, 16, 4)
        for i in (0, 2): a(f"v_pk_fma_f32 {vr(R+i,2)}, {vr(CS+i,2)}, {vr(ST,2)}, {vr(R+i,2)} op_sel_hi:[1,0,1] neg_lo:[1,0,0] neg_hi:[1,0,0]")
        for i in (0, 2): a(f"v_pk_mul_f32 {vr(R+i,2)}, {vr(R+i,2)}, {vr(ST+2,2)} op_sel_hi:[1,0]")
        for r in range(4): a(f"v_mul_f32 v{R+8+r}, 0xbfb8aa3b, v{R+r}")
        for r in range(4): a(f"v_mov_b32 v{R+4+r}, v{R+r}")
        for r in range(4): a(f"v_exp_f32 v{R+8+r}, v{R+8+r}")
        for r in range(4): a(f"v_permlane32_swap_b32 v{R+4+r}, v{R+12+r}")
        for r in range(4): a(f"v_add_f32 v{R+8+r}, 1.0, v{R+8+r}")
        for r in range(4): a(f"v_rcp_f32 v{R+8+r}, v{R+8+r}")
        for r in range(4): a(f"v_mul_f32 v{R+8+r}, v{R+8+r}, v{R+r}")
        for r in range(4): a(f"v_mul_f32 v{R+8+r}, v{R+8+r}, v{R+12+r}")
        a(f"v_cvt_pk_bf16_f32 v{R+4}, v{R+8}, v{R+9}")
        a(f"v_cvt_pk_bf16_f32 v{R+5}, v{R+10}, v{R+11}")
        a("s_mov_b32 exec_hi, 0")
        a(f"ds_write_b64 v60, {vr(R+4,2)}")
        self.exec_all()
        a("s_waitcnt lgkmcnt(0)")
        self.stamp(9)
        a.label("L_E_down")
        a("s_barrier")
        a("ds_read_b128 v[8:11], v254")
        a("s_waitcnt lgkmcnt(0)")
        for t in range(4):
            a(f"v_mfma_f32_16x16x32_bf16 {vr(12+4*t,4)}, {vr(DW+4*t,4)}, v[8:11], 0")
        for t in range(4):
            self.exec_mask(0x11111111 << t)
            self.tag24(DA, 12 + 4 * t)
        self.exec_all()
        a(f"buffer_store_dwordx4 {vr(DA,4)}, v255, {srd(SRD_WS)}, s{S_P3} offen sc1")
        self.stamp(8)
        a.label("L_E_done")

if __name__ == "__main__":
    import argparse
    ap = argparse.ArgumentParser()
    ap.add_argument("-o", default="sequential_preLN__compressed_kv_cla__swiglu_ffn__decode.s")
    ap.add_argument("--stamps", action="store_true")
    ap.add_argument("--t_first", type=int, default=0)
    ap.add_argument("--t_sweep", type=int, default=0)
    ap.add_argument("--t_delay", type=int, default=3)
    ap.add_argument("--role_early", type=int, default=0)
    ap.add_argument("--prefetch", default="plain")
    ap.add_argument("--role_fl", default="nt")
    ap.add_argument("--pf_late", type=int, default=1)
    ap.add_argument("--role_lead", type=int, default=0)
    ap.add_argument("--touch", type=int, default=1)
    ap.add_argument("--w_delay", type=int, default=0)
    args = ap.parse_args()
    open(args.o, "w").write(Gen(stamps=args.stamps, t_first=args.t_first, t_sweep=args.t_sweep, t_delay=args.t_delay, role_early=args.role_early, prefetch=args.prefetch, role_fl=args.role_fl, pf_late=args.pf_late, role_lead=args.role_lead, touch=args.touch, w_delay=args.w_delay).build())
```
